```python
import torch

def _softmax(x, axis=-1):
    return torch.softmax(x, dim=axis)
def _gelu(x):
    return torch.nn.functional.gelu(x, approximate="tanh")
def _silu(x):
    return torch.nn.functional.silu(x)
def _sigmoid(x):
    return torch.sigmoid(x)
def _layernorm(x, axis=-1, eps=1e-5):
    m = x.mean(dim=axis, keepdim=True)
    v = x.var(dim=axis, keepdim=True, unbiased=False)
    return (x - m) / torch.sqrt(v + eps)
def _scatter_add(tgt, idx, src, axis=0):
    return tgt.clone().index_add_(axis, idx, src)
def _segment_sum(src, seg, n):
    out = torch.zeros((n,) + src.shape[1:], dtype=src.dtype)
    return out.index_add_(0, seg, src)
def _pad(x, pw):
    flat = tuple(v for pair in reversed(pw) for v in pair)
    return torch.nn.functional.pad(x, flat)

kernel_name = 'standalone__ragged_sequences_packed_sequences__ragged'

def setup_inputs():

    _w = (lambda a: (lambda t: t.to(torch.bfloat16) if t.is_floating_point() else t)(torch.as_tensor(a)))
    cu = torch.tensor([0, 400, 516, 964, 1456, 1702, 1900, 2021, 2266], dtype=torch.int64)
    T = int(cu[-1])
    H, D = 16, 128
    lens = torch.diff(cu)
    seg_ids = torch.repeat_interleave(torch.arange(len(lens), dtype=torch.int64), lens)
    return {
        "q": _w((lambda *s: torch.randn(*s, dtype=torch.bfloat16) * 0.8)(T, H, D)),
        "k": _w((lambda *s: torch.randn(*s, dtype=torch.bfloat16) * 0.8)(T, H, D)),
        "v": _w((lambda *s: torch.randn(*s, dtype=torch.bfloat16) * 0.05)(T, H, D)),
        "seg_ids": _w(seg_ids),
    }

def reference(q, k, v, seg_ids):
    T, H, D = q.shape
    scale = D ** -0.5
    same_seq = seg_ids[:, None] == seg_ids[None, :]
    logits = torch.einsum("qhd,khd->hqk", q, k) * scale
    bias = (1.0 - (lambda x, dt: x.to(dt))(same_seq, q.dtype)) * (-1e9)
    p = _softmax(logits + bias[None, :, :], axis=-1)
    return torch.einsum("hqk,khd->qhd", p, v)
```

```python
import sys, math

NAME = "standalone__ragged_sequences_packed_sequences__ragged"
CU = [0, 400, 516, 964, 1456, 1702, 1900, 2021, 2266]
T = 2266
ROWB = 4096
NBYTES = T * ROWB

GRP = 1088
TILE = 8 * GRP
NK, NV = 5, 4
HALF_LDS = (NK + NV) * TILE
LDS_TOTAL = 2 * HALF_LDS

def build_table():
    ent = []
    def seg(i):
        return CU[i], CU[i + 1] - CU[i]
    def ksplit(si, qt_starts):
        s, L = seg(si)
        nt = (L + 31) // 32
        nA = (nt + 1) // 2
        for q0 in qt_starts:
            a = (s, nA * 32, s + q0 * 32, s + L)
            b = (s + nA * 32, L - nA * 32, s + q0 * 32, s + L)
            ent.append((a, b, 1, q0))
    ksplit(3, [0, 4, 8, 12])
    ksplit(2, [0, 4, 8, 11])
    ksplit(0, [0, 4, 7, 10])
    for si in (4, 7, 5):
        s, L = seg(si)
        ent.append(((s, L, s, s + L), (s, L, s + 128, s + L), 0, 0))
    s1, L1 = seg(1)
    s6, L6 = seg(6)
    ent.append(((s1, L1, s1, s1 + L1), (s6, L6, s6, s6 + L6), 0, 0))
    assert len(ent) == 16
    nxt = {}
    rows = []
    for j, (a, b, merge, q0) in enumerate(ent):
        nA = (a[1] + 31) // 32
        nB = (b[1] + 31) // 32
        assert nA >= 2 and nB >= 2
        niter = max(nA, nB)
        a = list(a); b = list(b)
        if merge:
            if j + 1 < 16 and ent[j + 1][2] and ent[j + 1][0][0] == a[0]:
                lim = ent[j + 1][0][2]
                a[3] = min(a[3], lim); b[3] = min(b[3], lim)
        for h in (a, b):
            rows.append((h[0], h[1], h[2], h[3] | (merge << 16) | (niter << 20)))
    return rows

TABLE = build_table()

vKoff, vVoff = 1, 2
vKbE, vKbO, vVb01, vVb23 = 3, 4, 5, 6
vKaE, vKaO, vVa01, vVa23 = 7, 8, 9, 10
vMC, vL, vTS, vH4, vOut = 11, 12, 13, 14, 15
vT = 16
vP = 24
vX = 32
vS = 48
vO = 64
vQ = 128
vK = 160
vV = 192
vE = 224

sQ, sK, sV, sO = 8, 12, 16, 20
sC, sTHR = 40, 41
sT, sN, sNIT, sNM2, sMERGE, sQLIM, sQROW = 42, 43, 44, 45, 46, 47, 48
sKG, sKLEFT, sKLDS, sKSTART, sKEND = 49, 50, 51, 52, 53
sVG, sVLEFT, sVLDS, sVSTART, sVEND = 54, 55, 56, 57, 58
sKRD, sKRDS, sKRDE = 59, 60, 61
sVRD, sVRDS, sVRDE = 62, 63, 64
sTA, sTB = 65, 66
sOOB, sRET, sNV, sHB = 67, 68, 69, 70
sSO01, sSO23 = 71, 72

out = []
def e(s):
    out.append("    " + s)
def lab(s):
    out.append(s + ":")
def cm(s):
    out.append("    ; " + s)

def vr(b, n):
    return "v[%d:%d]" % (b, b + n - 1)

class DS:
    def __init__(self):
        self.q = []
    def reset(self):
        self.q = []
    def issue(self, regs):
        self.q.append(set(regs))
    def need(self, regs):
        regs = set(regs)
        last = -1
        for i, s in enumerate(self.q):
            if s & regs:
                last = i
        if last < 0:
            return
        n = len(self.q) - 1 - last
        n = min(n, 15)
        e("s_waitcnt lgkmcnt(%d)" % n)
        self.q = self.q[len(self.q) - n:] if n else []
ds = DS()

def issue_K():
    e("s_cmp_gt_i32 s%d, 0" % sKLEFT)
    e("s_cselect_b32 s%d, s%d, s%d" % (sTA, sKG, sOOB))
    e("s_mov_b32 m0, s%d" % sKLDS)
    e("s_add_u32 s%d, s%d, 0x10000" % (sTB, sTA))
    e("buffer_load_dwordx4 v%d, s[%d:%d], s%d offen lds" % (vKoff, sK, sK + 3, sTA))
    e("s_add_u32 m0, s%d, %d" % (sKLDS, 4 * GRP))
    e("s_add_u32 s%d, s%d, 0x20000" % (sKG, sKG))
    e("buffer_load_dwordx4 v%d, s[%d:%d], s%d offen lds" % (vKoff, sK, sK + 3, sTB))
    e("s_sub_u32 s%d, s%d, 1" % (sKLEFT, sKLEFT))
    e("s_add_u32 s%d, s%d, %d" % (sKLDS, sKLDS, TILE))
    e("s_cmp_eq_u32 s%d, s%d" % (sKLDS, sKEND))
    e("s_cselect_b32 s%d, s%d, s%d" % (sKLDS, sKSTART, sKLDS))

def issue_V():
    e("s_cmp_gt_i32 s%d, 0" % sVLEFT)
    e("s_cselect_b32 s%d, s%d, s%d" % (sTA, sVG, sOOB))
    e("s_mov_b32 m0, s%d" % sVLDS)
    e("s_add_u32 s%d, s%d, 0x10000" % (sTB, sTA))
    e("buffer_load_dwordx4 v%d, s[%d:%d], s%d offen lds" % (vVoff, sV, sV + 3, sTA))
    e("s_add_u32 m0, s%d, %d" % (sVLDS, 4 * GRP))
    e("s_add_u32 s%d, s%d, 0x20000" % (sVG, sVG))
    e("buffer_load_dwordx4 v%d, s[%d:%d], s%d offen lds" % (vVoff, sV, sV + 3, sTB))
    e("s_sub_u32 s%d, s%d, 1" % (sVLEFT, sVLEFT))
    e("s_add_u32 s%d, s%d, %d" % (sVLDS, sVLDS, TILE))
    e("s_cmp_eq_u32 s%d, s%d" % (sVLDS, sVEND))
    e("s_cselect_b32 s%d, s%d, s%d" % (sVLDS, sVSTART, sVLDS))

def header():
    e("s_waitcnt vmcnt(8) lgkmcnt(0)")
    ds.reset()
    e("s_barrier")
    issue_K()
    issue_V()

def k_addr():
    e("v_add_u32 v%d, s%d, v%d" % (vKaE, sKRD, vKbE))
    e("v_add_u32 v%d, s%d, v%d" % (vKaO, sKRD, vKbO))
    e("s_add_u32 s%d, s%d, %d" % (sKRD, sKRD, TILE))
    e("s_cmp_eq_u32 s%d, s%d" % (sKRD, sKRDE))
    e("s_cselect_b32 s%d, s%d, s%d" % (sKRD, sKRDS, sKRD))

def v_addr():
    e("v_add_u32 v%d, s%d, v%d" % (vVa01, sVRD, vVb01))
    e("v_add_u32 v%d, s%d, v%d" % (vVa23, sVRD, vVb23))
    e("s_add_u32 s%d, s%d, %d" % (sVRD, sVRD, TILE))
    e("s_cmp_eq_u32 s%d, s%d" % (sVRD, sVRDE))
    e("s_cselect_b32 s%d, s%d, s%d" % (sVRD, sVRDS, sVRD))

def k_read(s):
    d = vK + 4 * s
    a = vKaO if (s & 1) else vKaE
    e("ds_read_b128 %s, v%d offset:%d" % (vr(d, 4), a, (s >> 1) * 64))
    ds.issue(range(d, d + 4))

def v_read(kh, b, jj):
    d = vV + (kh * 4 + b) * 4 + jj * 2
    a = vVa23 if b >= 2 else vVa01
    off = kh * 4 * GRP + jj * 512 + (b & 1) * 64
    e("ds_read_b64_tr_b16 %s, v%d offset:%d" % (vr(d, 2), a, off))
    ds.issue(range(d, d + 2))

def qk_mfma(s, first_c=None):
    ds.need(range(vK + 4 * s, vK + 4 * s + 4))
    c = vr(vS, 16) if (s > 0 or first_c) else "0"
    e("v_mfma_f32_32x32x16_bf16 %s, %s, %s, %s" % (vr(vS, 16), vr(vK + 4 * s, 4), vr(vQ + 4 * s, 4), c))

def pv_mfma(m):
    kh, b = m >> 2, m & 3
    f = vV + (kh * 4 + b) * 4
    ds.need(range(f, f + 4))
    e("v_mfma_f32_32x32x16_bf16 %s, %s, %s, %s" % (vr(vO + 16 * b, 16), vr(f, 4), vr(vP + 4 * kh, 4), vr(vO + 16 * b, 16)))

def EXP(t, x): return lambda: e("v_exp_f32 v%d, v%d" % (vT + t, vX + x))
def ADD(t): return lambda: e("v_add_f32 v%d, v%d, v%d" % (vTS, vTS, vT + t))
def ADD2(t0, t1): return lambda: e("v_add_f32 v%d, v%d, v%d" % (vTS, vT + t0, vT + t1))
def CVT(p, t0, t1): return lambda: e("v_cvt_pk_bf16_f32 v%d, v%d, v%d" % (vP + p, vT + t0, vT + t1))
def FMA(i): return lambda: e("v_fma_f32 v%d, v%d, s%d, -v%d" % (vX + i, vS + i, sC, vMC))
def VRD(kh, b): return lambda: (v_read(kh, b, 0), v_read(kh, b, 1))
def KRD(s): return lambda: k_read(s)

GAPS_A = [
    [VRD(0, 0), EXP(0, 6), EXP(1, 7)],
    [VRD(0, 1), ADD(0), ADD(1), CVT(3, 0, 1), EXP(2, 8)],
    [VRD(0, 2), EXP(3, 9), ADD(2), EXP(4, 10)],
    [VRD(0, 3), ADD(3), CVT(4, 2, 3), EXP(5, 11), ADD(4)],
    [VRD(1, 0), EXP(6, 12), ADD(5), CVT(5, 4, 5)],
    [VRD(1, 1), EXP(7, 13), ADD(6), EXP(0, 14)],
    [VRD(1, 2), ADD(7), CVT(6, 6, 7), EXP(1, 15), ADD(0)],
    [VRD(1, 3), ADD(1), CVT(7, 0, 1)],
]
GAPS_B = [
    [KRD(0), KRD(1)],
    [KRD(2), KRD(3)],
    [KRD(4), KRD(5), FMA(0), FMA(1), FMA(2), FMA(3)],
    [KRD(6), KRD(7), FMA(4), FMA(5), FMA(6), FMA(7), EXP(2, 0)],
    [FMA(8), FMA(9), FMA(10), FMA(11), EXP(3, 1), EXP(4, 2)],
    [FMA(12), FMA(13), FMA(14), FMA(15), ADD2(2, 3), CVT(0, 2, 3), EXP(5, 3)],
    [EXP(6, 4), ADD(4), EXP(7, 5), ADD(5), CVT(1, 4, 5)],
    [ADD(6), ADD(7), CVT(2, 6, 7)],
]

def check(ret):
    e("s_mov_b32 s%d, %d" % (sRET, ret))
    e("v_cmp_lt_f32 vcc, s%d, v%d" % (sTHR, vTS))
    e("s_cbranch_vccnz L_rare")
    lab("L_ret%d" % ret)
    e("v_add_f32 v%d, v%d, v%d" % (vL, vL, vTS))

def gen():
    out.append("; @launch grid=(256,1,1) block=(512,1,1) lds=%d" % LDS_TOTAL)
    out.append('.amdgcn_target "amdgcn-amd-amdhsa--gfx950"')
    out.append(".text")
    out.append(".globl %s_kernel" % NAME)
    out.append(".p2align 8")
    out.append(".type %s_kernel,@function" % NAME)
    lab("%s_kernel" % NAME)
    e("s_cmp_ge_u32 s2, 256")
    e("s_cbranch_scc1 L_end")
    e("s_load_dwordx4 s[24:27], s[0:1], 0")
    e("s_load_dwordx2 s[28:29], s[0:1], 16")
    e("s_load_dwordx2 s[30:31], s[0:1], 32")
    e("v_lshrrev_b32 v1, 6, v0")
    e("s_and_b32 s4, s2, 7")
    e("v_readfirstlane_b32 s3, v1")
    e("s_lshl_b32 s4, s4, 1")
    e("s_bfe_u32 s5, s2, 0x10003")
    e("s_or_b32 s4, s4, s5")
    e("s_lshr_b32 s5, s2, 4")
    e("s_lshr_b32 s6, s3, 2")
    e("s_and_b32 s7, s3, 3")
    e("s_lshl_b32 s5, s5, 1")
    e("s_add_u32 s5, s5, s6")
    e("s_lshl_b32 s5, s5, 4")
    e("s_getpc_b64 s[32:33]")
    lab("L_pc")
    e("s_add_u32 s32, s32, L_table-L_pc")
    e("s_addc_u32 s33, s33, 0")
    e("s_load_dwordx4 s[36:39], s[32:33], s5")
    cm("lane constants")
    e("v_and_b32 v0, 63, v0")
    e("s_lshl_b32 s34, s4, 8")
    e("v_lshrrev_b32 v16, 4, v0")
    e("v_and_b32 v17, 15, v0")
    e("s_lshl_b32 s35, s7, 14")
    e("s_add_u32 s35, s35, s34")
    e("v_xor_b32 v18, v17, v16")
    e("v_lshlrev_b32 v18, 4, v18")
    e("v_lshl_add_u32 v18, v16, 12, v18")
    e("v_add_u32 v%d, s35, v18" % vKoff)
    e("s_lshl_b32 s35, s7, 12")
    e("s_add_u32 s35, s35, s34")
    e("v_lshlrev_b32 v18, 4, v17")
    e("v_lshl_add_u32 v18, v16, 14, v18")
    e("v_add_u32 v%d, s35, v18" % vVoff)
    e("s_mul_i32 s%d, s6, %d" % (sHB, HALF_LDS))
    e("v_and_b32 v16, 31, v0")
    e("v_lshrrev_b32 v17, 5, v0")
    e("v_lshlrev_b32 v%d, 2, v17" % vH4)
    e("v_lshrrev_b32 v18, 2, v16")
    e("v_and_b32 v19, 3, v16")
    e("v_mul_u32_u24 v18, %d, v18" % GRP)
    e("v_lshl_add_u32 v18, v19, 8, v18")
    e("v_xor_b32 v19, v19, v17")
    e("v_lshlrev_b32 v19, 4, v19")
    e("v_add_u32 v%d, v18, v19" % vKbE)
    e("v_xor_b32 v19, 32, v19")
    e("v_add_u32 v%d, v18, v19" % vKbO)
    e("v_bfe_u32 v18, v0, 2, 2")
    e("v_mul_u32_u24 v18, %d, v18" % GRP)
    e("v_lshl_add_u32 v18, v17, 8, v18")
    e("v_bfe_u32 v19, v0, 4, 1")
    e("v_lshl_add_u32 v18, v19, 5, v18")
    e("v_and_b32 v19, 3, v0")
    e("v_lshl_add_u32 v18, v19, 3, v18")
    e("s_lshl_b32 s%d, s6, 7" % sSO01)
    e("s_xor_b32 s%d, s%d, 128" % (sSO23, sSO01))
    e("v_add_u32 v%d, s%d, v18" % (vVb01, sSO01))
    e("v_add_u32 v%d, s%d, v18" % (vVb23, sSO23))
    c = (128 ** -0.5) * math.log2(math.e)
    import struct
    e("s_mov_b32 s%d, 0x%08x" % (sC, struct.unpack("<I", struct.pack("<f", c))[0]))
    e("s_mov_b32 s%d, 0x43800000" % sTHR)
    e("s_mov_b32 s%d, 0x40000000" % sOOB)
    e("s_mul_i32 s35, s7, %d" % GRP)
    e("s_add_u32 s%d, s%d, s35" % (sKSTART, sHB))
    e("s_add_u32 s%d, s%d, %d" % (sKEND, sKSTART, NK * TILE))
    e("s_mov_b32 s%d, s%d" % (sKLDS, sKSTART))
    e("s_add_u32 s%d, s%d, %d" % (sVSTART, sKSTART, NK * TILE))
    e("s_add_u32 s%d, s%d, %d" % (sVEND, sVSTART, NV * TILE))
    e("s_mov_b32 s%d, s%d" % (sVLDS, sVSTART))
    e("s_mov_b32 s%d, s%d" % (sKRDS, sHB))
    e("s_add_u32 s%d, s%d, %d" % (sKRDE, sHB, NK * TILE))
    e("s_mov_b32 s%d, s%d" % (sKRD, sKRDS))
    e("s_mov_b32 s%d, s%d" % (sVRDS, sKRDE))
    e("s_add_u32 s%d, s%d, %d" % (sVRDE, sVRDS, NV * TILE))
    e("s_mov_b32 s%d, s%d" % (sVRD, sVRDS))
    e("s_waitcnt lgkmcnt(0)")
    cm("SRDs")
    for (srd, p) in ((sQ, 24), (sK, 26), (sV, 28), (sO, 30)):
        e("s_mov_b32 s%d, s%d" % (srd, p))
        e("s_and_b32 s%d, s%d, 0xffff" % (srd + 1, p + 1))
        e("s_mov_b32 s%d, %d" % (srd + 2, NBYTES))
        e("s_mov_b32 s%d, 0x00020000" % (srd + 3))
    cm("table decode")
    e("s_lshl_b32 s%d, s36, 12" % sKG)
    e("s_mov_b32 s%d, s%d" % (sVG, sKG))
    e("s_add_u32 s%d, s37, 31" % sN)
    e("s_lshr_b32 s%d, s%d, 5" % (sN, sN))
    e("s_mov_b32 s%d, s%d" % (sKLEFT, sN))
    e("s_mov_b32 s%d, s%d" % (sVLEFT, sN))
    issue_K()
    e("s_lshl_b32 s35, s7, 5")
    e("s_add_u32 s%d, s38, s35" % sQROW)
    e("s_and_b32 s%d, s39, 0xffff" % sQLIM)
    e("v_add_u32 v18, s%d, v16" % sQROW)
    e("v_lshlrev_b32 v19, 12, v18")
    e("v_lshl_add_u32 v19, v17, 4, v19")
    e("v_add_u32 v19, s34, v19")
    for s in range(8):
        e("buffer_load_dwordx4 %s, v19, s[%d:%d], 0 offen offset:%d" % (vr(vQ + 4 * s, 4), sQ, sQ + 3, s * 32))
    issue_K()
    issue_V()
    issue_K()
    issue_V()
    issue_K()
    issue_V()
    issue_K()
    e("v_cmp_gt_u32 vcc, s%d, v18" % sQLIM)
    e("v_mov_b32 v20, 0x7ff00000")
    e("s_bfe_u32 s%d, s39, 0x10010" % sMERGE)
    e("s_lshr_b32 s%d, s39, 20" % sNIT)
    e("v_cndmask_b32 v%d, v20, v19, vcc" % vOut)
    e("s_sub_u32 s%d, s%d, 2" % (sNM2, sN))
    e("s_sub_u32 s35, s%d, 1" % sN)
    e("s_lshl_b32 s35, s35, 5")
    e("s_sub_u32 s%d, s37, s35" % sNV)
    e("s_mov_b32 s%d, 0" % sT)
    for i in range(64):
        e("v_mov_b32 v%d, 0" % (vO + i))
    e("v_mov_b32 v%d, 0" % vL)
    e("s_waitcnt vmcnt(12)")
    e("s_barrier")
    e("s_cmp_ge_u32 s%d, s%d" % (sQROW, sQLIM))
    e("s_cbranch_scc1 L_service")
    cm("first tile: QK(0)")
    ds.reset()
    k_addr()
    for s in range(8):
        k_read(s)
    for s in range(8):
        qk_mfma(s)
    k_addr()
    e("s_nop 7")
    e("s_nop 3")
    cm("row max of tile 0")
    t0, t1 = vT, vT + 1
    e("v_max3_f32 v%d, v%d, v%d, v%d" % (t0, vS, vS + 1, vS + 2))
    for i in range(3, 15, 2):
        e("v_max3_f32 v%d, v%d, v%d, v%d" % (t0, t0, vS + i, vS + i + 1))
    e("v_max_f32 v%d, v%d, v%d" % (t0, t0, vS + 15))
    e("v_mov_b32 v%d, v%d" % (t1, t0))
    e("s_nop 1")
    e("v_permlane32_swap_b32 v%d, v%d" % (t0, t1))
    e("v_max_f32 v%d, v%d, v%d" % (t0, t0, t1))
    e("v_mul_f32 v%d, s%d, v%d" % (vMC, sC, t0))
    for g in GAPS_B:
        for f in g:
            f()
        e("s_nop 0")
    cm("main loop")
    lab("L_loop")
    header()
    v_addr()
    e("s_cmp_eq_u32 s%d, s%d" % (sT, sNM2))
    e("s_cbranch_scc1 L_mask")
    qk_mfma(0)
    lab("L_mask_ret")
    for s in range(8):
        if s > 0:
            qk_mfma(s)
        for f in GAPS_A[s]:
            f()
    check(0)
    k_addr()
    for m in range(8):
        pv_mfma(m)
        for f in GAPS_B[m]:
            f()
    e("s_add_u32 s%d, s%d, 1" % (sT, sT))
    e("s_cmp_le_u32 s%d, s%d" % (sT, sNM2))
    e("s_cbranch_scc1 L_loop")
    cm("tail iteration")
    header()
    v_addr()
    for s in range(8):
        for f in GAPS_A[s]:
            f()
        e("s_nop 0")
    check(1)
    e("s_nop 1")
    for m in range(8):
        pv_mfma(m)
    e("s_add_u32 s%d, s%d, 1" % (sT, sT))
    lab("L_service")
    e("s_cmp_ge_u32 s%d, s%d" % (sT, sNIT))
    e("s_cbranch_scc1 L_epi")
    header()
    e("s_add_u32 s%d, s%d, 1" % (sT, sT))
    e("s_branch L_service")
    cm("epilogue")
    lab("L_epi")
    e("s_waitcnt vmcnt(0)")
    e("s_cmp_ge_u32 s%d, s%d" % (sQROW, sQLIM))
    e("s_cbranch_scc1 L_idle_epi")
    e("s_nop 7")
    e("v_mov_b32 v%d, v%d" % (t0, vL))
    e("s_nop 1")
    e("v_permlane32_swap_b32 v%d, v%d" % (vL, t0))
    e("v_add_f32 v%d, v%d, v%d" % (vL, vL, t0))
    e("s_cmp_eq_u32 s%d, 0" % sMERGE)
    e("s_cbranch_scc1 L_nomerge")
    cm("merge with partner wave (wave ^ 4)")
    e("s_barrier")
    e("s_mul_i32 s35, s3, %d" % TILE)
    e("v_lshlrev_b32 v%d, 4, v0" % t0)
    e("v_add_u32 v%d, s35, v%d" % (t0, t0))
    e("v_lshlrev_b32 v%d, 3, v0" % t1)
    e("v_add_u32 v%d, s35, v%d" % (t1, t1))
    for i in range(8):
        e("ds_write_b128 v%d, %s offset:%d" % (t0, vr(vO + 32 + 4 * i, 4), i * 1024))
    e("ds_write_b64 v%d, v[%d:%d] offset:8192" % (t1, vMC + 1, vMC + 2))
    out.pop()
    e("v_mov_b32 v%d, v%d" % (vT + 2, vMC))
    e("v_mov_b32 v%d, v%d" % (vT + 3, vL))
    e("ds_write_b64 v%d, v[%d:%d] offset:8192" % (t1, vT + 2, vT + 3))
    e("s_xor_b32 s35, s3, 4")
    e("s_mul_i32 s35, s35, %d" % TILE)
    e("v_lshlrev_b32 v%d, 4, v0" % t0)
    e("v_add_u32 v%d, s35, v%d" % (t0, t0))
    e("v_lshlrev_b32 v%d, 3, v0" % t1)
    e("v_add_u32 v%d, s35, v%d" % (t1, t1))
    e("s_waitcnt lgkmcnt(0)")
    e("s_barrier")
    e("ds_read_b64 v[%d:%d], v%d offset:8192" % (vT + 2, vT + 3, t1))
    for i in range(8):
        e("ds_read_b128 %s, v%d offset:%d" % (vr(vK + 4 * i, 4), t0, i * 1024))
    e("s_waitcnt lgkmcnt(8)")
    mo, lo, mn, fa, fb = vT + 2, vT + 3, vT + 4, vT + 5, vT + 6
    e("v_max_f32 v%d, v%d, v%d" % (mn, vMC, mo))
    e("v_sub_f32 v%d, v%d, v%d" % (fa, vMC, mn))
    e("v_sub_f32 v%d, v%d, v%d" % (fb, mo, mn))
    e("v_exp_f32 v%d, v%d" % (fa, fa))
    e("v_exp_f32 v%d, v%d" % (fb, fb))
    e("s_nop 0")
    e("v_mul_f32 v%d, v%d, v%d" % (vL, vL, fa))
    e("v_fmac_f32 v%d, v%d, v%d" % (vL, lo, fb))
    e("v_rcp_f32 v%d, v%d" % (vL, vL))
    e("s_nop 0")
    e("v_mul_f32 v%d, v%d, v%d" % (fa, fa, vL))
    e("v_mul_f32 v%d, v%d, v%d" % (fb, fb, vL))
    for i in range(32):
        e("v_mul_f32 v%d, v%d, v%d" % (vO + i, vO + i, fa))
    e("s_waitcnt lgkmcnt(0)")
    for i in range(32):
        e("v_fmac_f32 v%d, v%d, v%d" % (vO + i, vK + i, fb))
    e("s_branch L_store")
    lab("L_nomerge")
    e("v_rcp_f32 v%d, v%d" % (fa, vL))
    e("s_nop 0")
    for i in range(64):
        e("v_mul_f32 v%d, v%d, v%d" % (vO + i, vO + i, fa))
    lab("L_store")
    def store_blocks(b0, so):
        for b in (b0, b0 + 1):
            for p in range(2):
                q = vE + ((b & 1) * 2 + p) * 4
                src = vO + 16 * b + 8 * p
                for k in range(4):
                    e("v_cvt_pk_bf16_f32 v%d, v%d, v%d" % (q + k, src + 2 * k, src + 2 * k + 1))
                e("s_nop 1")
                e("v_permlane32_swap_b32 v%d, v%d" % (q, q + 2))
                e("v_permlane32_swap_b32 v%d, v%d" % (q + 1, q + 3))
                e("buffer_store_dwordx4 %s, v%d, s[%d:%d], s%d offen offset:%d" % (vr(q, 4), vOut, sO, sO + 3, so, (b & 1) * 64 + p * 32))
    store_blocks(0, sSO01)
    e("s_cmp_lg_u32 s%d, 0" % sMERGE)
    e("s_cbranch_scc1 L_end")
    e("s_nop 1")
    store_blocks(2, sSO23)
    e("s_endpgm")
    lab("L_idle_epi")
    e("s_cmp_eq_u32 s%d, 0" % sMERGE)
    e("s_cbranch_scc1 L_end")
    e("s_barrier")
    e("s_barrier")
    lab("L_end")
    e("s_endpgm")
    cm("tail-tile mask: S = (key < nv) ? 0 : -inf, then first QK MFMA accumulates onto it")
    lab("L_mask")
    e("s_sub_u32 s35, s%d, 1" % sNV)
    e("v_sub_u32 v%d, s35, v%d" % (vT, vH4))
    for r in range(16):
        cr = 8 * (r >> 2) + (r & 3)
        e("v_subrev_u32 v%d, %d, v%d" % (vS + r, cr, vT))
    for r in range(16):
        e("v_ashrrev_i32 v%d, 31, v%d" % (vS + r, vS + r))
    for r in range(16):
        e("v_and_b32 v%d, 0xff800000, v%d" % (vS + r, vS + r))
    e("s_nop 1")
    e("v_mfma_f32_32x32x16_bf16 %s, %s, %s, %s" % (vr(vS, 16), vr(vK, 4), vr(vQ, 4), vr(vS, 16)))
    e("s_branch L_mask_ret")
    cm("rare path: running max grew too much; rescale and recompute this tile's P")
    lab("L_rare")
    e("v_max3_f32 v%d, v%d, v%d, v%d" % (t0, vX, vX + 1, vX + 2))
    for i in range(3, 15, 2):
        e("v_max3_f32 v%d, v%d, v%d, v%d" % (t0, t0, vX + i, vX + i + 1))
    e("v_max_f32 v%d, v%d, v%d" % (t0, t0, vX + 15))
    e("v_mov_b32 v%d, v%d" % (t1, t0))
    e("s_nop 1")
    e("v_permlane32_swap_b32 v%d, v%d" % (t0, t1))
    e("v_max3_f32 v%d, v%d, v%d, 0" % (t0, t0, t1))
    e("v_add_f32 v%d, v%d, v%d" % (vMC, vMC, t0))
    e("v_exp_f32 v%d, -v%d" % (t1, t0))
    e("s_nop 0")
    e("v_mul_f32 v%d, v%d, v%d" % (vL, vL, t1))
    for i in range(64):
        e("v_mul_f32 v%d, v%d, v%d" % (vO + i, vO + i, t1))
    for i in range(16):
        e("v_sub_f32 v%d, v%d, v%d" % (vX + i, vX + i, t0))
    e("v_mov_b32 v%d, 0" % vTS)
    for p in range(8):
        a, b = vT + 2 + (p & 1) * 2, vT + 3 + (p & 1) * 2
        e("v_exp_f32 v%d, v%d" % (a, vX + 2 * p))
        e("v_exp_f32 v%d, v%d" % (b, vX + 2 * p + 1))
        e("s_nop 0")
        e("v_add_f32 v%d, v%d, v%d" % (vTS, vTS, a))
        e("v_add_f32 v%d, v%d, v%d" % (vTS, vTS, b))
        e("v_cvt_pk_bf16_f32 v%d, v%d, v%d" % (vP + p, a, b))
    e("s_nop 1")
    e("s_cmp_eq_u32 s%d, 0" % sRET)
    e("s_cbranch_scc1 L_ret0")
    e("s_branch L_ret1")
    out.append(".p2align 6")
    out.append(".type L_table,@object")
    lab("L_table")
    for r in TABLE:
        out.append("    .long %d, %d, %d, 0x%x" % r)
    out.append(".size L_table, %d" % (16 * len(TABLE)))
    out.append('.section .rodata,"a"')
    out.append(".p2align 6")
    out.append(".amdhsa_kernel %s_kernel" % NAME)
    out.append("  .amdhsa_next_free_vgpr 256")
    out.append("  .amdhsa_next_free_sgpr 96")
    out.append("  .amdhsa_accum_offset 256")
    out.append("  .amdhsa_group_segment_fixed_size 0")
    out.append("  .amdhsa_kernarg_size 56")
    out.append("  .amdhsa_user_sgpr_count 2")
    out.append("  .amdhsa_user_sgpr_kernarg_segment_ptr 1")
    out.append("  .amdhsa_system_sgpr_workgroup_id_x 1")
    out.append(".end_amdhsa_kernel")

gen()
dst = sys.argv[1] if len(sys.argv) > 1 else "cdna_kernels/%s.s" % NAME
open(dst, "w").write("\n".join(out) + "\n")
print("wrote", dst, len(out), "lines")
for i, r in enumerate(TABLE):
    print(i // 2, i & 1, r[0], r[1], r[2], r[3] & 0xffff, (r[3] >> 16) & 1, r[3] >> 20)
```

```python
import sys, math, struct

NAME = "standalone__ragged_sequences_packed_sequences__ragged"
CU = [0, 400, 516, 964, 1456, 1702, 1900, 2021, 2266]
T = 2266
ROWB = 4096
NBYTES = T * ROWB

XF = set(a[4:] for a in sys.argv if a.startswith("--x-"))
sys.argv = [a for a in sys.argv if not a.startswith("--x-")]
PROF = "--prof" in sys.argv
if PROF: sys.argv.remove("--prof")

GRP = 1088
TILE = 8 * GRP
NS = 4
HALF_LDS = 2 * NS * TILE
XTRA = 2 * HALF_LDS
LDS_TOTAL = XTRA + 2 * TILE

def build_table():
    ent = []
    def seg(i):
        return CU[i], CU[i + 1] - CU[i]
    def ksplit(si, qt_starts):
        s, L = seg(si)
        nt = (L + 31) // 32
        nA = (nt + 1) // 2
        for q0 in qt_starts:
            a = (s, nA * 32, s + q0 * 32, s + L)
            b = (s + nA * 32, L - nA * 32, s + q0 * 32, s + L)
            ent.append((a, b, 1, q0))
    ksplit(3, [0, 4, 8, 12])
    ksplit(2, [0, 4, 8, 11])
    ksplit(0, [0, 4, 7, 10])
    for si in (4, 7, 5):
        s, L = seg(si)
        ent.append(((s, L, s, s + L), (s, L, s + 128, s + L), 0, 0))
    s1, L1 = seg(1)
    s6, L6 = seg(6)
    ent.append(((s1, L1, s1, s1 + L1), (s6, L6, s6, s6 + L6), 0, 0))
    assert len(ent) == 16
    rows = []
    for j, (a, b, merge, q0) in enumerate(ent):
        nA = (a[1] + 31) // 32
        nB = (b[1] + 31) // 32
        assert nA >= 2 and nB >= 2
        niter = max(nA, nB)
        a = list(a); b = list(b)
        if merge:
            if j + 1 < 16 and ent[j + 1][2] and ent[j + 1][0][0] == a[0]:
                lim = ent[j + 1][0][2]
                a[3] = min(a[3], lim); b[3] = min(b[3], lim)
        for h in (a, b):
            rows.append((h[0], h[1], h[2], h[3] | (merge << 16) | (niter << 20)))
    return rows

TABLE = build_table()

vKoff, vVoff, vKoff2, vVoff2 = 1, 2, 3, 4
vKbE, vKbO, vVb01, vVb23 = 5, 6, 7, 8
vOut, vMC, vL = 9, 10, 11
vTS2 = 12
vH4, vTS = 14, 15
vT = 16
vP = 24
vX = 32
vS = 48
vO = 64
vQ = 128
vK = 160
vV = 192
vE = 224
vM = 240

sQ, sK, sV, sO = 8, 12, 16, 20
sC, sTHR = 40, 42
sT, sN, sNIT, sNM2, sMERGE, sQLIM, sQROW = 43, 44, 45, 46, 47, 48, 49
sKG, sVG, sKW, sVW = 50, 51, 52, 53
sNV, sHB, sSO01, sSO23, sQST = 54, 55, 56, 57, 58
sLNK, sMASKA, sRAREA = 76, 78, 80

out = []
def e(s):
    out.append("    " + s)
def lab(s):
    out.append(s + ":")
def cm(s):
    out.append("    ; " + s)
def vr(b, n):
    return "v[%d:%d]" % (b, b + n - 1)

def stamp():
    if not PROF: return
    e("s_memtime s[90:91]")
    e("s_waitcnt lgkmcnt(0)")
    e("s_mov_b32 m0, s92")
    e("s_nop 0")
    e("v_writelane_b32 v239, s90, m0")
    e("s_add_u32 s92, s92, 1")
def stamp_flush():
    if not PROF: return
    stamp()
    e("s_load_dwordx2 s[84:85], s[0:1], 48")
    e("s_waitcnt lgkmcnt(0)")
    e("s_and_b32 s85, s85, 0xffff")
    e("s_mov_b32 s86, 0x1000000")
    e("s_mov_b32 s87, 0x00020000")
    e("s_lshl_b32 s93, s2, 3")
    e("s_add_u32 s93, s93, s3")
    e("s_lshl_b32 s93, s93, 8")
    e("v_lshlrev_b32 v238, 2, v0")
    e("buffer_store_dword v239, v238, s[84:87], s93 offen")

class DS:
    def __init__(self):
        self.q = []
    def reset(self, q=None):
        self.q = list(q) if q else []
    def issue(self, regs):
        self.q.append(set(regs))
    def need(self, regs):
        regs = set(regs)
        last = -1
        for i, s in enumerate(self.q):
            if s & regs:
                last = i
        if last < 0:
            return
        n = len(self.q) - 1 - last
        n = min(n, 15)
        e("s_waitcnt lgkmcnt(%d)" % n)
        self.q = self.q[len(self.q) - n:] if n else []
ds = DS()

def KM(slot, j): return lambda: e("s_add_u32 m0, s%d, %d" % (sKW, slot * TILE + j * 4 * GRP))
def KL(j):
    def f():
        e("buffer_load_dwordx4 v%d, s[%d:%d], s%d offen lds" % (vKoff2 if j else vKoff, sK, sK + 3, sKG))
        if j: e("s_add_u32 s%d, s%d, 0x20000" % (sKG, sKG))
    return f
def VM(slot, j): return lambda: e("s_add_u32 m0, s%d, %d" % (sVW, slot * TILE + j * 4 * GRP))
def VL(j):
    def f():
        e("buffer_load_dwordx4 v%d, s[%d:%d], s%d offen lds" % (vVoff2 if j else vVoff, sV, sV + 3, sVG))
        if j: e("s_add_u32 s%d, s%d, 0x20000" % (sVG, sVG))
    return f
def issue_K(slot):
    KM(slot, 0)(); e("s_nop 0"); KL(0)(); KM(slot, 1)(); e("s_nop 0"); KL(1)()
def issue_V(slot):
    VM(slot, 0)(); e("s_nop 0"); VL(0)(); VM(slot, 1)(); e("s_nop 0"); VL(1)()

def k_read(s, slot):
    d = vK + 4 * s
    a = vKbO if (s & 1) else vKbE
    e("ds_read_b128 %s, v%d offset:%d" % (vr(d, 4), a, slot * TILE + (s >> 1) * 64))
    ds.issue(range(d, d + 4))

def v_read(kh, b, jj, slot, a01, a23):
    d = vV + (kh * 4 + b) * 4 + jj * 2
    a = a23 if b >= 2 else a01
    off = slot * TILE + kh * 4 * GRP + jj * 512 + (b & 1) * 64
    e("ds_read_b64_tr_b16 %s, v%d offset:%d" % (vr(d, 2), a, off))
    ds.issue(range(d, d + 2))

def qk_mfma(s):
    ds.need(list(range(vK + 4 * s, vK + 4 * s + 4)) + list(range(vQ + 4 * s, vQ + 4 * s + 4)))
    c = vr(vS, 16) if s > 0 else "0"
    e("v_mfma_f32_32x32x16_bf16 %s, %s, %s, %s" % (vr(vS, 16), vr(vK + 4 * s, 4), vr(vQ + 4 * s, 4), c))

def pv_mfma(m):
    kh, b = m >> 2, m & 3
    f = vV + (kh * 4 + b) * 4
    ds.need(range(f, f + 4))
    e("v_mfma_f32_32x32x16_bf16 %s, %s, %s, %s" % (vr(vO + 16 * b, 16), vr(f, 4), vr(vP + 4 * kh, 4), vr(vO + 16 * b, 16)))

def EXP(t, x): return lambda: e("v_exp_f32 v%d, v%d" % (vT + t, vX + x))
if "pkadd" in XF:
    def PADD(t): return lambda: e("v_pk_add_f32 %s, %s, %s" % (vr(vTS2, 2), vr(vTS2, 2), vr(vT + t, 2)))
    def PADD2(t0, t1): return lambda: e("v_pk_add_f32 %s, %s, %s" % (vr(vTS2, 2), vr(vT + t0, 2), vr(vT + t1, 2)))
else:
    def PADD(t): return lambda: (e("v_add_f32 v%d, v%d, v%d" % (vTS2, vTS2, vT + t)), e("v_add_f32 v%d, v%d, v%d" % (vTS2 + 1, vTS2 + 1, vT + t + 1)))
    def PADD2(t0, t1): return lambda: (e("v_add_f32 v%d, v%d, v%d" % (vTS2, vT + t0, vT + t1)), e("v_add_f32 v%d, v%d, v%d" % (vTS2 + 1, vT + t0 + 1, vT + t1 + 1)))
def CVT(p, t): return lambda: e("v_cvt_pk_bf16_f32 v%d, v%d, v%d" % (vP + p, vT + t, vT + t + 1))
if "pkfma" in XF:
    def PFMA(i): return lambda: e("v_pk_fma_f32 %s, %s, s[%d:%d], %s op_sel_hi:[1,0,0] neg_lo:[0,0,1] neg_hi:[0,0,1]" % (vr(vX + i, 2), vr(vS + i, 2), sC, sC + 1, vr(vMC, 2)))
else:
    def PFMA(i): return lambda: (e("v_fma_f32 v%d, v%d, s%d, -v%d" % (vX + i, vS + i, sC, vMC)), e("v_fma_f32 v%d, v%d, s%d, -v%d" % (vX + i + 1, vS + i + 1, sC, vMC)))

def gaps_A(vslot, kslot, a01=vVb01, a23=vVb23, dma=True):
    def VRD(kh, b): return lambda: (v_read(kh, b, 0, vslot, a01, a23), v_read(kh, b, 1, vslot, a01, a23))
    g = [
        [VRD(0, 0), EXP(0, 6), EXP(1, 7)],
        [VRD(0, 1), EXP(2, 8), PADD(0), CVT(3, 0)],
        [VRD(0, 2), EXP(3, 9), EXP(4, 10)],
        [VRD(0, 3), EXP(5, 11), PADD(2), CVT(4, 2)],
        [VRD(1, 0), EXP(6, 12), PADD(4), CVT(5, 4)],
        [VRD(1, 1), EXP(7, 13), EXP(0, 14)],
        [VRD(1, 2), EXP(1, 15), PADD(6), CVT(6, 6)],
        [VRD(1, 3), PADD(0), CVT(7, 0)],
    ]
    if dma:
        g[2] = [KM(kslot, 0)] + g[2] + [KL(0)]
        g[5] = [KM(kslot, 1)] + g[5] + [KL(1)]
    return g

def gaps_B(kslot, vslot, dma=True):
    def KRD(s): return lambda: k_read(s, kslot)
    g = [
        [KRD(0), KRD(1)],
        [KRD(2), KRD(3)],
        [KRD(4), KRD(5), PFMA(0), PFMA(2)],
        [KRD(6), KRD(7), PFMA(4), PFMA(6), EXP(2, 0), EXP(3, 1)],
        [PFMA(8), PFMA(10), EXP(4, 2), EXP(5, 3)],
        [PFMA(12), PFMA(14), CVT(0, 2), PADD2(2, 4)],
        [EXP(6, 4), EXP(7, 5), CVT(1, 4)],
        [PADD(6), CVT(2, 6)],
    ]
    if dma:
        g[0] = [VM(vslot, 0)] + g[0] + [VL(0)]
        g[1] = [VM(vslot, 1)] + g[1] + [VL(1)]
    return g

KPEND = [set(range(vK + 4 * s, vK + 4 * s + 4)) for s in range(8)]
stubs = []
def check(tag):
    e("v_add_f32 v%d, v%d, v%d" % (vTS, vTS2, vTS2 + 1))
    e("v_cmp_lt_f32 vcc, s%d, v%d" % (sTHR, vTS))
    e("s_cbranch_vccnz L_rs%s" % tag)
    lab("L_ret%s" % tag)
    e("v_add_f32 v%d, v%d, v%d" % (vL, vL, vTS))
    stubs.append(tag)

def header(vm=6):
    e("s_waitcnt vmcnt(%d) lgkmcnt(0)" % vm)
    e("s_barrier")
    stamp()

def gen():
    out.append("; @launch grid=(256,1,1) block=(512,1,1) lds=%d" % LDS_TOTAL)
    out.append('.amdgcn_target "amdgcn-amd-amdhsa--gfx950"')
    out.append(".text")
    out.append(".globl %s_kernel" % NAME)
    out.append(".p2align 8")
    out.append(".type %s_kernel,@function" % NAME)
    lab("%s_kernel" % NAME)
    e("s_cmp_ge_u32 s2, 256")
    e("s_cbranch_scc1 L_end")
    if PROF:
        e("s_mov_b32 s92, 0")
        e("v_mov_b32 v239, 0")
    stamp()
    e("s_load_dwordx4 s[24:27], s[0:1], 0")
    e("s_load_dwordx2 s[28:29], s[0:1], 16")
    e("s_load_dwordx2 s[30:31], s[0:1], 32")
    e("v_lshrrev_b32 v1, 6, v0")
    e("s_and_b32 s4, s2, 7")
    e("v_readfirstlane_b32 s3, v1")
    e("s_lshl_b32 s4, s4, 1")
    e("s_bfe_u32 s5, s2, 0x10003")
    e("s_or_b32 s4, s4, s5")
    e("s_lshr_b32 s5, s2, 4")
    e("s_lshr_b32 s6, s3, 2")
    e("s_and_b32 s7, s3, 3")
    e("s_lshl_b32 s5, s5, 1")
    e("s_add_u32 s5, s5, s6")
    e("s_lshl_b32 s5, s5, 4")
    e("s_getpc_b64 s[32:33]")
    lab("L_pc")
    e("s_add_u32 s%d, s32, L_rare-L_pc" % sRAREA)
    e("s_addc_u32 s%d, s33, 0" % (sRAREA + 1))
    e("s_add_u32 s32, s32, L_table-L_pc")
    e("s_addc_u32 s33, s33, 0")
    e("s_load_dwordx4 s[36:39], s[32:33], s5")
    cm("lane constants")
    e("v_and_b32 v0, 63, v0")
    e("s_lshl_b32 s34, s4, 8")
    e("v_lshrrev_b32 v16, 4, v0")
    e("v_and_b32 v17, 15, v0")
    e("s_lshl_b32 s35, s7, 14")
    e("s_add_u32 s35, s35, s34")
    e("v_xor_b32 v18, v17, v16")
    e("v_lshlrev_b32 v18, 4, v18")
    e("v_lshl_add_u32 v22, v16, 12, v18")
    e("v_add_u32 v%d, s35, v22" % vKoff)
    e("v_add_u32 v%d, 0x10000, v%d" % (vKoff2, vKoff))
    e("s_lshl_b32 s35, s7, 12")
    e("s_add_u32 s35, s35, s34")
    e("v_lshlrev_b32 v18, 4, v17")
    e("v_lshl_add_u32 v18, v16, 14, v18")
    e("v_add_u32 v%d, s35, v18" % vVoff)
    e("v_add_u32 v%d, 0x10000, v%d" % (vVoff2, vVoff))
    e("s_mul_i32 s%d, s6, %d" % (sHB, HALF_LDS))
    e("s_mul_i32 s35, s7, %d" % GRP)
    e("s_add_u32 s%d, s%d, s35" % (sKW, sHB))
    e("s_add_u32 s%d, s%d, %d" % (sVW, sKW, NS * TILE))
    e("s_add_u32 s33, s7, 4")
    e("s_cmp_eq_u32 s7, 1")
    e("s_cselect_b32 s33, 3, s33")
    e("s_mul_i32 s59, s33, %d" % TILE)
    e("v_and_b32 v16, 31, v0")
    e("v_lshrrev_b32 v17, 5, v0")
    e("s_lshl_b32 s35, s7, 5")
    e("s_waitcnt lgkmcnt(0)")
    stamp()
    cm("SRDs; K/V descriptors end at the stream's last key")
    e("s_add_u32 s33, s36, s37")
    e("s_lshl_b32 s33, s33, 12")
    e("s_mov_b32 s%d, s26" % sK)
    e("s_and_b32 s%d, s27, 0xffff" % (sK + 1))
    e("s_mov_b32 s%d, s33" % (sK + 2))
    e("s_mov_b32 s%d, 0x00020000" % (sK + 3))
    e("s_lshl_b32 s%d, s36, 12" % sKG)
    issue_K(0)
    e("s_mov_b32 s%d, s24" % sQ)
    e("s_and_b32 s%d, s25, 0xffff" % (sQ + 1))
    e("s_mov_b32 s%d, %d" % (sQ + 2, NBYTES))
    e("s_mov_b32 s%d, 0x00020000" % (sQ + 3))
    e("s_add_u32 s%d, s38, s35" % sQROW)
    cm("Q tile -> staging slot, K-tile layout; k-split WGs share it between the halves (each loads 4 of 8 groups)")
    e("s_bfe_u32 s%d, s39, 0x10010" % sMERGE)
    e("s_cmp_eq_u32 s%d, 0" % sMERGE)
    e("s_cselect_b32 s60, s6, 0")
    e("s_cselect_b32 s61, 0, s6")
    e("s_mul_i32 s35, s60, %d" % TILE)
    e("s_add_u32 s35, s35, %d" % XTRA)
    e("s_mul_i32 s60, s60, %d" % HALF_LDS)
    e("s_add_u32 s60, s60, s59")
    e("s_cmp_eq_u32 s7, 0")
    e("s_cselect_b32 s%d, s35, s60" % sQST)
    e("s_lshl_b32 s35, s%d, 12" % sQROW)
    e("s_add_u32 s35, s35, s34")
    e("v_add_u32 v22, s35, v22")
    e("s_lshl_b32 s35, s61, 16")
    e("s_mul_i32 s61, s61, %d" % (4 * GRP))
    e("s_add_u32 s61, s61, s%d" % sQST)
    for g in range(8):
        if g == 4:
            e("s_cmp_lg_u32 s%d, 0" % sMERGE)
            e("s_cbranch_scc1 L_qdone")
        e("s_add_u32 m0, s61, %d" % (g * GRP))
        e("s_nop 0")
        e("buffer_load_dwordx4 v22, s[%d:%d], s35 offen lds" % (sQ, sQ + 3))
        if g < 7:
            e("s_add_u32 s35, s35, 0x4000")
    lab("L_qdone")
    issue_K(1)
    e("s_mov_b32 s%d, s28" % sV)
    e("s_and_b32 s%d, s29, 0xffff" % (sV + 1))
    e("s_mov_b32 s%d, s33" % (sV + 2))
    e("s_mov_b32 s%d, 0x00020000" % (sV + 3))
    e("s_lshl_b32 s%d, s36, 12" % sVG)
    issue_V(0)
    if "early" in XF:
        issue_K(2)
        issue_V(1)
    e("s_mov_b32 s%d, s30" % sO)
    e("s_and_b32 s%d, s31, 0xffff" % (sO + 1))
    e("s_mov_b32 s%d, %d" % (sO + 2, NBYTES))
    e("s_mov_b32 s%d, 0x00020000" % (sO + 3))
    cm("remaining setup while the first loads fly")
    e("v_add_u32 v18, s%d, v16" % sQROW)
    e("v_lshlrev_b32 v19, 12, v18")
    e("v_lshl_add_u32 v19, v17, 4, v19")
    e("v_add_u32 v19, s34, v19")
    e("v_lshlrev_b32 v%d, 2, v17" % vH4)
    e("v_lshrrev_b32 v20, 2, v16")
    e("v_and_b32 v21, 3, v16")
    e("v_mul_u32_u24 v20, %d, v20" % GRP)
    e("v_lshl_add_u32 v20, v21, 8, v20")
    e("v_xor_b32 v21, v21, v17")
    e("v_lshlrev_b32 v21, 4, v21")
    e("v_add_u32 v22, v20, v21")
    e("v_xor_b32 v21, 32, v21")
    e("v_add_u32 v23, v20, v21")
    e("v_add_u32 v%d, s%d, v22" % (vKbE, sHB))
    e("v_add_u32 v%d, s%d, v23" % (vKbO, sHB))
    e("v_add_u32 v22, s%d, v22" % sQST)
    e("v_add_u32 v23, s%d, v23" % sQST)
    e("v_bfe_u32 v20, v0, 2, 2")
    e("v_mul_u32_u24 v20, %d, v20" % GRP)
    e("v_lshl_add_u32 v20, v17, 8, v20")
    e("v_bfe_u32 v21, v0, 4, 1")
    e("v_lshl_add_u32 v20, v21, 5, v20")
    e("v_and_b32 v21, 3, v0")
    e("v_lshl_add_u32 v20, v21, 3, v20")
    e("s_lshl_b32 s%d, s6, 7" % sSO01)
    e("s_xor_b32 s%d, s%d, 128" % (sSO23, sSO01))
    e("s_add_u32 s35, s%d, %d" % (sHB, NS * TILE))
    e("v_add_u32 v20, s35, v20")
    e("v_add_u32 v%d, s%d, v20" % (vVb01, sSO01))
    e("v_add_u32 v%d, s%d, v20" % (vVb23, sSO23))
    c = (128 ** -0.5) * math.log2(math.e)
    e("s_mov_b32 s%d, 0x%08x" % (sC, struct.unpack("<I", struct.pack("<f", c))[0]))
    e("s_mov_b32 s%d, s%d" % (sC + 1, sC))
    e("s_mov_b32 s%d, 0x43800000" % sTHR)
    e("s_add_u32 s%d, s37, 31" % sN)
    e("s_lshr_b32 s%d, s%d, 5" % (sN, sN))
    e("s_and_b32 s%d, s39, 0xffff" % sQLIM)
    e("v_cmp_gt_u32 vcc, s%d, v18" % sQLIM)
    e("v_mov_b32 v20, 0x7ff00000")
    e("s_bfe_u32 s%d, s39, 0x10010" % sMERGE)
    e("s_lshr_b32 s%d, s39, 20" % sNIT)
    e("v_cndmask_b32 v%d, v20, v19, vcc" % vOut)
    e("s_sub_u32 s%d, s%d, 2" % (sNM2, sN))
    e("s_sub_u32 s35, s%d, 1" % sN)
    e("s_lshl_b32 s35, s35, 5")
    e("s_sub_u32 s%d, s37, s35" % sNV)
    e("s_mov_b32 s%d, 0" % sT)
    cm("tail-tile mask block: (key < nv) ? 0 : -inf ; used as the C input of the last tile's first QK MFMA")
    e("s_sub_u32 s35, s%d, 1" % sNV)
    e("v_sub_u32 v20, s35, v%d" % vH4)
    for r in range(16):
        cr = 8 * (r >> 2) + (r & 3)
        e("v_subrev_u32 v%d, %d, v20" % (vM + r, cr))
    for r in range(16):
        e("v_ashrrev_i32 v%d, 31, v%d" % (vM + r, vM + r))
    for r in range(16):
        e("v_and_b32 v%d, 0xff800000, v%d" % (vM + r, vM + r))
    for i in range(0, 64, 2):
        e("v_pk_mov_b32 %s, 0, 0" % vr(vO + i, 2))
    e("v_mov_b32 v%d, 0" % vL)
    stamp()
    cm("P1: K0 and Q landed")
    e("s_waitcnt vmcnt(%d)" % (8 if "early" in XF else 4))
    e("s_barrier")
    stamp()
    if "early" not in XF:
        issue_K(2)
        issue_V(1)
    e("s_cmp_ge_u32 s%d, s%d" % (sQROW, sQLIM))
    e("s_cbranch_scc1 L_idle_p2")
    ds.reset()
    for s in range(8):
        d = vQ + 4 * s
        e("ds_read_b128 %s, v%d offset:%d" % (vr(d, 4), 23 if (s & 1) else 22, (s >> 1) * 64))
        ds.issue(range(d, d + 4))
        k_read(s, 0)
    for s in range(8):
        qk_mfma(s)
    cm("P2: K1 landed; Q staging slots are free after this barrier")
    e("s_waitcnt vmcnt(6)")
    e("s_barrier")
    stamp()
    issue_K(3)
    issue_V(2)
    cm("row max of tile 0")
    t0, t1 = vT, vT + 1
    e("v_max3_f32 v%d, v%d, v%d, v%d" % (t0, vS, vS + 1, vS + 2))
    for i in range(3, 15, 2):
        e("v_max3_f32 v%d, v%d, v%d, v%d" % (t0, t0, vS + i, vS + i + 1))
    e("v_max_f32 v%d, v%d, v%d" % (t0, t0, vS + 15))
    e("v_mov_b32 v%d, v%d" % (t1, t0))
    e("s_nop 1")
    e("v_permlane32_swap_b32 v%d, v%d" % (t0, t1))
    e("v_max_f32 v%d, v%d, v%d" % (t0, t0, t1))
    e("v_mul_f32 v%d, s%d, v%d" % (vMC, sC, t0))
    for g in gaps_B(1, 0, dma=False):
        for f in g:
            f()
        e("s_nop 0")
    cm("main loop, unrolled over the 4 ring phases")
    for p in range(4):
        lab("L_loop%d" % p)
        header()
        ds.reset()
        e("s_cmp_lg_u32 s%d, s%d" % (sT, sNM2))
        e("s_cbranch_scc1 L_nm%d" % p)
        e("v_mfma_f32_32x32x16_bf16 %s, %s, %s, %s" % (vr(vS, 16), vr(vK, 4), vr(vQ, 4), vr(vM, 16)))
        e("s_branch L_m%d" % p)
        lab("L_nm%d" % p)
        qk_mfma(0)
        lab("L_m%d" % p)
        ga = gaps_A(p, p)
        for s in range(8):
            if s > 0:
                qk_mfma(s)
            for f in ga[s]:
                f()
        check(str(p))
        gb = gaps_B((p + 2) % 4, (p + 3) % 4)
        for m in range(8):
            pv_mfma(m)
            for f in gb[m]:
                f()
        e("s_add_u32 s%d, s%d, 1" % (sT, sT))
        e("s_cmp_gt_u32 s%d, s%d" % (sT, sNM2))
        if p < 3:
            e("s_cbranch_scc1 L_tail")
        else:
            e("s_cbranch_scc0 L_loop0")
    cm("tail iteration")
    lab("L_tail")
    e("s_and_b32 s35, s%d, 3" % sT)
    e("s_mul_i32 s35, s35, %d" % TILE)
    e("v_add_u32 v%d, s35, v%d" % (vE, vVb01))
    e("v_add_u32 v%d, s35, v%d" % (vE + 1, vVb23))
    header()
    ds.reset()
    for g in gaps_A(0, 0, vE, vE + 1, dma=False):
        for f in g:
            f()
        e("s_nop 0")
    check("t")
    e("s_nop 1")
    for m in range(8):
        pv_mfma(m)
    e("s_add_u32 s%d, s%d, 1" % (sT, sT))
    lab("L_service")
    e("s_cmp_ge_u32 s%d, s%d" % (sT, sNIT))
    e("s_cbranch_scc1 L_epi")
    e("s_barrier")
    e("s_add_u32 s%d, s%d, 1" % (sT, sT))
    e("s_branch L_service")
    cm("epilogue")
    lab("L_epi")
    stamp()
    e("v_mov_b32 v%d, v%d" % (t0, vL))
    e("s_waitcnt vmcnt(0)")
    e("s_nop 0")
    e("v_permlane32_swap_b32 v%d, v%d" % (vL, t0))
    e("v_add_f32 v%d, v%d, v%d" % (vL, vL, t0))
    fa, fb = vT + 4, vT + 6
    mo, lo, mn = vT + 2, vT + 3, vT
    e("s_cmp_eq_u32 s%d, 0" % sMERGE)
    e("s_cbranch_scc1 L_nomerge")
    cm("merge with partner wave (wave ^ 4): exchange through this wave's own DMA pieces of the K ring")
    e("v_lshlrev_b32 v%d, 4, v0" % t0)
    e("v_add_u32 v%d, s%d, v%d" % (t1, sKW, t0))
    e("s_add_u32 s33, s%d, %d" % (sKW, HALF_LDS))
    e("s_sub_u32 s35, s%d, %d" % (sKW, HALF_LDS))
    e("s_cmp_eq_u32 s6, 0")
    e("s_cselect_b32 s35, s33, s35")
    e("v_add_u32 v%d, s35, v%d" % (vE, t0))
    e("s_lshl_b32 s35, s3, 9")
    e("s_add_u32 s35, s35, %d" % XTRA)
    e("v_lshlrev_b32 v%d, 3, v0" % t0)
    e("v_add_u32 v%d, s35, v%d" % (vE + 1, t0))
    e("v_xor_b32 v%d, 0x800, v%d" % (vE + 2, vE + 1))
    e("s_nop 3")
    for i in range(8):
        e("ds_write_b128 v%d, %s offset:%d" % (t1, vr(vO + 32 + 4 * i, 4), (i >> 1) * TILE + (i & 1) * 4 * GRP))
    e("ds_write_b64 v%d, %s" % (vE + 1, vr(vMC, 2)))
    e("s_waitcnt lgkmcnt(0)")
    e("s_barrier")
    e("ds_read_b64 %s, v%d" % (vr(mo, 2), vE + 2))
    for i in range(8):
        e("ds_read_b128 %s, v%d offset:%d" % (vr(vK + 4 * i, 4), vE, (i >> 1) * TILE + (i & 1) * 4 * GRP))
    e("s_waitcnt lgkmcnt(8)")
    e("v_max_f32 v%d, v%d, v%d" % (mn, vMC, mo))
    e("v_sub_f32 v%d, v%d, v%d" % (fa, vMC, mn))
    e("v_sub_f32 v%d, v%d, v%d" % (fb, mo, mn))
    e("v_exp_f32 v%d, v%d" % (fa, fa))
    e("v_exp_f32 v%d, v%d" % (fb, fb))
    e("s_nop 0")
    e("v_mul_f32 v%d, v%d, v%d" % (vL, vL, fa))
    e("v_fmac_f32 v%d, v%d, v%d" % (vL, lo, fb))
    e("v_rcp_f32 v%d, v%d" % (vL, vL))
    e("s_nop 0")
    e("v_mul_f32 v%d, v%d, v%d" % (fa, fa, vL))
    e("v_mul_f32 v%d, v%d, v%d" % (fb, fb, vL))
    for i in range(0, 32, 2):
        e("v_pk_mul_f32 %s, %s, %s op_sel_hi:[1,0]" % (vr(vO + i, 2), vr(vO + i, 2), vr(fa, 2)))
    for i in range(0, 32, 2):
        if i % 4 == 0:
            e("s_waitcnt lgkmcnt(%d)" % (7 - i // 4))
        e("v_pk_fma_f32 %s, %s, %s, %s op_sel_hi:[1,0,1]" % (vr(vO + i, 2), vr(vK + i, 2), vr(fb, 2), vr(vO + i, 2)))
    e("s_branch L_store")
    lab("L_nomerge")
    e("v_rcp_f32 v%d, v%d" % (fa, vL))
    e("s_nop 7")
    for i in range(0, 64, 2):
        e("v_pk_mul_f32 %s, %s, %s op_sel_hi:[1,0]" % (vr(vO + i, 2), vr(vO + i, 2), vr(fa, 2)))
    lab("L_store")
    stamp()
    def store_blocks(b0, so):
        for b in (b0, b0 + 1):
            for p in range(2):
                q = vV + ((b & 3) * 2 + p) * 4
                src = vO + 16 * b + 8 * p
                for k in range(4):
                    e("v_cvt_pk_bf16_f32 v%d, v%d, v%d" % (q + k, src + 2 * k, src + 2 * k + 1))
                e("s_nop 1")
                e("v_permlane32_swap_b32 v%d, v%d" % (q, q + 2))
                e("v_permlane32_swap_b32 v%d, v%d" % (q + 1, q + 3))
                e("buffer_store_dwordx4 %s, v%d, s[%d:%d], s%d offen offset:%d" % (vr(q, 4), vOut, sO, sO + 3, so, (b & 1) * 64 + p * 32))
    store_blocks(0, sSO01)
    e("s_cmp_lg_u32 s%d, 0" % sMERGE)
    e("s_cbranch_scc1 L_fin")
    e("s_nop 1")
    store_blocks(2, sSO23)
    lab("L_fin")
    if PROF:
        e("s_waitcnt vmcnt(0)")
    stamp_flush()
    e("s_endpgm")
    cm("waves without q rows: only DMA duty and barriers")
    lab("L_idle_p2")
    e("s_waitcnt vmcnt(6)")
    e("s_barrier")
    issue_K(3)
    issue_V(2)
    lab("L_idle_loop")
    for p in range(4):
        e("s_waitcnt vmcnt(6)")
        e("s_barrier")
        issue_K(p)
        issue_V((p + 3) % 4)
        e("s_add_u32 s%d, s%d, 1" % (sT, sT))
        e("s_cmp_ge_u32 s%d, s%d" % (sT, sNIT))
        if p < 3:
            e("s_cbranch_scc1 L_idle_epi")
        else:
            e("s_cbranch_scc0 L_idle_loop")
    lab("L_idle_epi")
    e("s_waitcnt vmcnt(0)")
    e("s_cmp_eq_u32 s%d, 0" % sMERGE)
    e("s_cbranch_scc1 L_end")
    e("s_barrier")
    lab("L_end")
    e("s_endpgm")
    for tag in stubs:
        lab("L_rs%s" % tag)
        e("s_swappc_b64 s[%d:%d], s[%d:%d]" % (sLNK, sLNK + 1, sRAREA, sRAREA + 1))
        e("s_branch L_ret%s" % tag)
    cm("rare path: running max grew too much; rescale and recompute this tile's P")
    lab("L_rare")
    e("v_max3_f32 v%d, v%d, v%d, v%d" % (t0, vX, vX + 1, vX + 2))
    for i in range(3, 15, 2):
        e("v_max3_f32 v%d, v%d, v%d, v%d" % (t0, t0, vX + i, vX + i + 1))
    e("v_max_f32 v%d, v%d, v%d" % (t0, t0, vX + 15))
    e("v_mov_b32 v%d, v%d" % (t1, t0))
    e("s_nop 1")
    e("v_permlane32_swap_b32 v%d, v%d" % (t0, t1))
    e("v_max3_f32 v%d, v%d, v%d, 0" % (t0, t0, t1))
    e("v_add_f32 v%d, v%d, v%d" % (vMC, vMC, t0))
    e("v_exp_f32 v%d, -v%d" % (t1, t0))
    e("s_nop 0")
    e("v_mul_f32 v%d, v%d, v%d" % (vL, vL, t1))
    for i in range(64):
        e("v_mul_f32 v%d, v%d, v%d" % (vO + i, vO + i, t1))
    for i in range(16):
        e("v_sub_f32 v%d, v%d, v%d" % (vX + i, vX + i, t0))
    e("v_mov_b32 v%d, 0" % vTS)
    for p in range(8):
        a, b = vT + 2 + (p & 1) * 2, vT + 3 + (p & 1) * 2
        e("v_exp_f32 v%d, v%d" % (a, vX + 2 * p))
        e("v_exp_f32 v%d, v%d" % (b, vX + 2 * p + 1))
        e("s_nop 0")
        e("v_add_f32 v%d, v%d, v%d" % (vTS, vTS, a))
        e("v_add_f32 v%d, v%d, v%d" % (vTS, vTS, b))
        e("v_cvt_pk_bf16_f32 v%d, v%d, v%d" % (vP + p, a, b))
    e("s_nop 1")
    e("s_setpc_b64 s[%d:%d]" % (sLNK, sLNK + 1))
    out.append(".p2align 6")
    out.append(".type L_table,@object")
    lab("L_table")
    for r in TABLE:
        out.append("    .long %d, %d, %d, 0x%x" % r)
    out.append(".size L_table, %d" % (16 * len(TABLE)))
    out.append('.section .rodata,"a"')
    out.append(".p2align 6")
    out.append(".amdhsa_kernel %s_kernel" % NAME)
    out.append("  .amdhsa_next_free_vgpr 256")
    out.append("  .amdhsa_next_free_sgpr 96")
    out.append("  .amdhsa_accum_offset 256")
    out.append("  .amdhsa_group_segment_fixed_size 0")
    out.append("  .amdhsa_kernarg_size 56")
    out.append("  .amdhsa_user_sgpr_count 2")
    out.append("  .amdhsa_user_sgpr_kernarg_segment_ptr 1")
    out.append("  .amdhsa_system_sgpr_workgroup_id_x 1")
    out.append(".end_amdhsa_kernel")

assert XTRA % 4096 == 0, XTRA
gen()
dst = sys.argv[1] if len(sys.argv) > 1 else "cdna_kernels/%s.s" % NAME
open(dst, "w").write("\n".join(out) + "\n")
print("wrote", dst, len(out), "lines")
```

```python
import sys, math, struct

NAME = "standalone__ragged_sequences_packed_sequences__ragged"
CU = [0, 400, 516, 964, 1456, 1702, 1900, 2021, 2266]
T = 2266
ROWB = 4096
NBYTES = T * ROWB

XF = set(a[4:] for a in sys.argv if a.startswith("--x-"))
sys.argv = [a for a in sys.argv if not a.startswith("--x-")]
PROF = "--prof" in sys.argv
if PROF: sys.argv.remove("--prof")
STAGGER = "nostagger" not in XF

GRP = 1088
TILE = 8 * GRP
NK, NV = 4, 3
HALF_LDS = (NK + NV) * TILE
LDS_TOTAL = 2 * HALF_LDS

def build_table():
    ent = []
    def seg(i):
        return CU[i], CU[i + 1] - CU[i]
    def ksplit(si, qt_starts):
        s, L = seg(si)
        nt = (L + 31) // 32
        nA = (nt + 1) // 2
        for q0 in qt_starts:
            a = (s, nA * 32, s + q0 * 32, s + L)
            b = (s + nA * 32, L - nA * 32, s + q0 * 32, s + L)
            ent.append((a, b, 1, q0))
    ksplit(3, [0, 4, 8, 12])
    ksplit(2, [0, 4, 8, 11])
    ksplit(0, [0, 4, 7, 10])
    for si in (4, 7, 5):
        s, L = seg(si)
        ent.append(((s, L, s, s + L), (s, L, s + 128, s + L), 0, 0))
    s1, L1 = seg(1)
    s6, L6 = seg(6)
    ent.append(((s1, L1, s1, s1 + L1), (s6, L6, s6, s6 + L6), 0, 0))
    assert len(ent) == 16
    rows = []
    for j, (a, b, merge, q0) in enumerate(ent):
        nA = (a[1] + 31) // 32
        nB = (b[1] + 31) // 32
        assert nA >= 2 and nB >= 2
        niter = max(nA, nB)
        a = list(a); b = list(b)
        if merge:
            if j + 1 < 16 and ent[j + 1][2] and ent[j + 1][0][0] == a[0]:
                lim = ent[j + 1][0][2]
                a[3] = min(a[3], lim); b[3] = min(b[3], lim)
        for h in (a, b):
            rows.append((h[0], h[1], h[2], h[3] | (merge << 16) | (niter << 20)))
    return rows

TABLE = build_table()

vKoff, vVoff, vKoff2, vVoff2 = 1, 2, 240, 241
vKbE, vKbO, vVb01, vVb23 = 3, 4, 5, 6
vKaE, vKaO, vVa01, vVa23 = 7, 8, 9, 10
vMC, vL, vTS, vH4, vOut = 11, 12, 13, 14, 15
vT = 16
vP = 24
vX = 32
vS = 48
vO = 64
vQ = 128
vK = 160
vV = 192
vE = 224

sQ, sK, sV, sO = 8, 12, 16, 20
sC, sTHR = 40, 41
sT, sN, sNIT, sNM2, sMERGE, sQLIM, sQROW = 42, 43, 44, 45, 46, 47, 48
sKG, sKLDS, sKSTART, sKEND = 49, 51, 52, 53
sVG, sVLDS, sVSTART, sVEND = 54, 56, 57, 58
sKRD, sKRDS, sKRDE = 59, 60, 61
sVRD, sVRDS, sVRDE = 62, 63, 64
sH = 65
sKM2, sVM2 = 66, 67
sQST = 73
sRET, sNV, sHB = 68, 69, 70
sSO01, sSO23 = 71, 72
sHALF = 6

out = []
INLOOP = [False]
def e(s):
    out.append("    " + s)
def lab(s):
    out.append(s + ":")
def cm(s):
    out.append("    ; " + s)
def vr(b, n):
    return "v[%d:%d]" % (b, b + n - 1)

def stamp():
    if not PROF: return
    e("s_memtime s[90:91]")
    e("s_waitcnt lgkmcnt(0)")
    e("s_mov_b32 m0, s92")
    e("s_nop 0")
    e("v_writelane_b32 v255, s90, m0")
    e("s_add_u32 s92, s92, 1")
def stamp_flush():
    if not PROF: return
    stamp()
    e("s_load_dwordx2 s[84:85], s[0:1], 48")
    e("s_waitcnt lgkmcnt(0)")
    e("s_and_b32 s85, s85, 0xffff")
    e("s_mov_b32 s86, 0x1000000")
    e("s_mov_b32 s87, 0x00020000")
    e("s_lshl_b32 s93, s2, 3")
    e("s_add_u32 s93, s93, s3")
    e("s_lshl_b32 s93, s93, 8")
    e("v_lshlrev_b32 v254, 2, v0")
    e("buffer_store_dword v255, v254, s[84:87], s93 offen")

class DS:
    def __init__(self):
        self.q = []
    def reset(self, q=None):
        self.q = list(q) if q else []
    def issue(self, regs):
        self.q.append(set(regs))
    def need(self, regs):
        regs = set(regs)
        last = -1
        for i, s in enumerate(self.q):
            if s & regs:
                last = i
        if last < 0:
            return
        n = len(self.q) - 1 - last
        n = min(n, 15)
        e("s_waitcnt lgkmcnt(%d)" % n)
        self.q = self.q[len(self.q) - n:] if n else []
ds = DS()
KPEND = [set(range(vK + 4 * s, vK + 4 * s + 4)) for s in range(8)]

def issue_K():
    e("s_mov_b32 m0, s%d" % sKLDS)
    e("s_add_u32 s%d, s%d, %d" % (sKLDS, sKLDS, TILE))
    e("buffer_load_dwordx4 v%d, s[%d:%d], s%d offen lds" % (vKoff, sK, sK + 3, sKG))
    e("s_add_u32 m0, m0, %d" % (4 * GRP))
    e("s_cmp_eq_u32 s%d, s%d" % (sKLDS, sKEND))
    e("buffer_load_dwordx4 v%d, s[%d:%d], s%d offen lds" % (vKoff2, sK, sK + 3, sKG))
    e("s_cselect_b32 s%d, s%d, s%d" % (sKLDS, sKSTART, sKLDS))
    e("s_add_u32 s%d, s%d, 0x20000" % (sKG, sKG))

def issue_V():
    e("s_mov_b32 m0, s%d" % sVLDS)
    e("s_add_u32 s%d, s%d, %d" % (sVLDS, sVLDS, TILE))
    e("buffer_load_dwordx4 v%d, s[%d:%d], s%d offen lds" % (vVoff, sV, sV + 3, sVG))
    e("s_add_u32 m0, m0, %d" % (4 * GRP))
    e("s_cmp_eq_u32 s%d, s%d" % (sVLDS, sVEND))
    e("buffer_load_dwordx4 v%d, s[%d:%d], s%d offen lds" % (vVoff2, sV, sV + 3, sVG))
    e("s_cselect_b32 s%d, s%d, s%d" % (sVLDS, sVSTART, sVLDS))
    e("s_add_u32 s%d, s%d, 0x20000" % (sVG, sVG))

def KD1():
    e("s_mov_b32 m0, s%d" % sKLDS)
    e("s_add_u32 s%d, s%d, %d" % (sKM2, sKLDS, 4 * GRP))
    e("buffer_load_dwordx4 v%d, s[%d:%d], s%d offen lds" % (vKoff, sK, sK + 3, sKG))
    e("s_add_u32 s%d, s%d, %d" % (sKLDS, sKLDS, TILE))
    e("s_cmp_eq_u32 s%d, s%d" % (sKLDS, sKEND))
    e("s_cselect_b32 s%d, s%d, s%d" % (sKLDS, sKSTART, sKLDS))
def KD2():
    e("s_mov_b32 m0, s%d" % sKM2)
    e("s_nop 0")
    e("buffer_load_dwordx4 v%d, s[%d:%d], s%d offen lds" % (vKoff2, sK, sK + 3, sKG))
    e("s_add_u32 s%d, s%d, 0x20000" % (sKG, sKG))
def VD1():
    e("s_mov_b32 m0, s%d" % sVLDS)
    e("s_add_u32 s%d, s%d, %d" % (sVM2, sVLDS, 4 * GRP))
    e("buffer_load_dwordx4 v%d, s[%d:%d], s%d offen lds" % (vVoff, sV, sV + 3, sVG))
    e("s_add_u32 s%d, s%d, %d" % (sVLDS, sVLDS, TILE))
    e("s_cmp_eq_u32 s%d, s%d" % (sVLDS, sVEND))
    e("s_cselect_b32 s%d, s%d, s%d" % (sVLDS, sVSTART, sVLDS))
def VD2():
    e("s_mov_b32 m0, s%d" % sVM2)
    e("s_nop 0")
    e("buffer_load_dwordx4 v%d, s[%d:%d], s%d offen lds" % (vVoff2, sV, sV + 3, sVG))
    e("s_add_u32 s%d, s%d, 0x20000" % (sVG, sVG))

def header(vm):
    e("s_waitcnt vmcnt(%d) lgkmcnt(0)" % vm)
    e("s_barrier")
    stamp()
    e("s_add_u32 s%d, s%d, 1" % (sH, sH))

_uid = [0]
def cond_header(half, vm=None):
    if vm is None:
        vm = 4 if half == 0 else 2
    if not STAGGER:
        if half == 0:
            header(vm)
        return
    _uid[0] += 1
    l = "L_hs%d" % _uid[0]
    e("s_cmp_lg_u32 s%d, %d" % (sHALF, half))
    e("s_cbranch_scc1 %s" % l)
    header(vm)
    lab(l)

def k_addr():
    e("v_add_u32 v%d, s%d, v%d" % (vKaE, sKRD, vKbE))
    e("v_add_u32 v%d, s%d, v%d" % (vKaO, sKRD, vKbO))
    e("s_add_u32 s%d, s%d, %d" % (sKRD, sKRD, TILE))
    e("s_cmp_eq_u32 s%d, s%d" % (sKRD, sKRDE))
    e("s_cselect_b32 s%d, s%d, s%d" % (sKRD, sKRDS, sKRD))

def v_addr():
    e("v_add_u32 v%d, s%d, v%d" % (vVa01, sVRD, vVb01))
    e("v_add_u32 v%d, s%d, v%d" % (vVa23, sVRD, vVb23))
    e("s_add_u32 s%d, s%d, %d" % (sVRD, sVRD, TILE))
    e("s_cmp_eq_u32 s%d, s%d" % (sVRD, sVRDE))
    e("s_cselect_b32 s%d, s%d, s%d" % (sVRD, sVRDS, sVRD))

def k_read(s):
    d = vK + 4 * s
    a = vKaO if (s & 1) else vKaE
    e("ds_read_b128 %s, v%d offset:%d" % (vr(d, 4), a, (s >> 1) * 64))
    ds.issue(range(d, d + 4))

def v_read(kh, b, jj):
    d = vV + (kh * 4 + b) * 4 + jj * 2
    a = vVa23 if b >= 2 else vVa01
    off = kh * 4 * GRP + jj * 512 + (b & 1) * 64
    e("ds_read_b64_tr_b16 %s, v%d offset:%d" % (vr(d, 2), a, off))
    ds.issue(range(d, d + 2))

def qk_mfma(s):
    ds.need(list(range(vK + 4 * s, vK + 4 * s + 4)) + list(range(vQ + 4 * s, vQ + 4 * s + 4)))
    c = vr(vS, 16) if s > 0 else "0"
    e("v_mfma_f32_32x32x16_bf16 %s, %s, %s, %s" % (vr(vS, 16), vr(vK + 4 * s, 4), vr(vQ + 4 * s, 4), c))

def pv_mfma(m):
    kh, b = m >> 2, m & 3
    f = vV + (kh * 4 + b) * 4
    ds.need(range(f, f + 4))
    e("v_mfma_f32_32x32x16_bf16 %s, %s, %s, %s" % (vr(vO + 16 * b, 16), vr(f, 4), vr(vP + 4 * kh, 4), vr(vO + 16 * b, 16)))

def EXP(t, x): return lambda: e("v_exp_f32 v%d, v%d" % (vT + t, vX + x))
def ADD(t): return lambda: e("v_add_f32 v%d, v%d, v%d" % (vTS, vTS, vT + t))
def ADD2(t0, t1): return lambda: e("v_add_f32 v%d, v%d, v%d" % (vTS, vT + t0, vT + t1))
def CVT(p, t0, t1): return lambda: e("v_cvt_pk_bf16_f32 v%d, v%d, v%d" % (vP + p, vT + t0, vT + t1))
def FMA(i): return lambda: e("v_fma_f32 v%d, v%d, s%d, -v%d" % (vX + i, vS + i, sC, vMC))
def VRD(kh, b): return lambda: (v_read(kh, b, 0), v_read(kh, b, 1))
def KRD(s): return lambda: k_read(s)

GAPS_A = [
    [VRD(0, 0), EXP(0, 6), EXP(1, 7)],
    [VRD(0, 1), ADD(0), ADD(1), CVT(3, 0, 1), EXP(2, 8)],
    [VRD(0, 2), EXP(3, 9), ADD(2), EXP(4, 10)],
    [VRD(0, 3), ADD(3), CVT(4, 2, 3), EXP(5, 11), ADD(4)],
    [VRD(1, 0), EXP(6, 12), ADD(5), CVT(5, 4, 5)],
    [VRD(1, 1), EXP(7, 13), ADD(6), EXP(0, 14)],
    [VRD(1, 2), ADD(7), CVT(6, 6, 7), EXP(1, 15), ADD(0)],
    [VRD(1, 3), ADD(1), CVT(7, 0, 1)],
]
GAPS_B = [
    [KRD(0), KRD(1)],
    [KRD(2), KRD(3)],
    [KRD(4), KRD(5), FMA(0), FMA(1), FMA(2), FMA(3)],
    [KRD(6), KRD(7), FMA(4), FMA(5), FMA(6), FMA(7), EXP(2, 0)],
    [FMA(8), FMA(9), FMA(10), FMA(11), EXP(3, 1), EXP(4, 2)],
    [FMA(12), FMA(13), FMA(14), FMA(15), ADD2(2, 3), CVT(0, 2, 3), EXP(5, 3)],
    [EXP(6, 4), ADD(4), EXP(7, 5), ADD(5), CVT(1, 4, 5)],
    [ADD(6), ADD(7), CVT(2, 6, 7)],
]

def check(ret):
    e("s_mov_b32 s%d, %d" % (sRET, ret))
    e("v_cmp_lt_f32 vcc, s%d, v%d" % (sTHR, vTS))
    e("s_cbranch_vccnz L_rare")
    lab("L_ret%d" % ret)
    e("v_add_f32 v%d, v%d, v%d" % (vL, vL, vTS))

def gen():
    out.append("; @launch grid=(256,1,1) block=(512,1,1) lds=%d" % LDS_TOTAL)
    out.append('.amdgcn_target "amdgcn-amd-amdhsa--gfx950"')
    out.append(".text")
    out.append(".globl %s_kernel" % NAME)
    out.append(".p2align 8")
    out.append(".type %s_kernel,@function" % NAME)
    lab("%s_kernel" % NAME)
    e("s_cmp_ge_u32 s2, 256")
    e("s_cbranch_scc1 L_end")
    if PROF:
        e("s_mov_b32 s92, 0")
        e("v_mov_b32 v255, 0")
    stamp()
    e("s_load_dwordx4 s[24:27], s[0:1], 0")
    e("s_load_dwordx2 s[28:29], s[0:1], 16")
    e("s_load_dwordx2 s[30:31], s[0:1], 32")
    e("v_lshrrev_b32 v1, 6, v0")
    e("s_and_b32 s4, s2, 7")
    e("v_readfirstlane_b32 s3, v1")
    e("s_lshl_b32 s4, s4, 1")
    e("s_bfe_u32 s5, s2, 0x10003")
    e("s_or_b32 s4, s4, s5")
    e("s_lshr_b32 s5, s2, 4")
    e("s_lshr_b32 s6, s3, 2")
    e("s_and_b32 s7, s3, 3")
    e("s_lshl_b32 s5, s5, 1")
    e("s_add_u32 s5, s5, s6")
    e("s_lshl_b32 s5, s5, 4")
    e("s_getpc_b64 s[32:33]")
    lab("L_pc")
    e("s_add_u32 s32, s32, L_table-L_pc")
    e("s_addc_u32 s33, s33, 0")
    e("s_load_dwordx4 s[36:39], s[32:33], s5")
    cm("lane constants")
    e("v_and_b32 v0, 63, v0")
    e("s_lshl_b32 s34, s4, 8")
    e("v_lshrrev_b32 v16, 4, v0")
    e("v_and_b32 v17, 15, v0")
    e("s_lshl_b32 s35, s7, 14")
    e("s_add_u32 s35, s35, s34")
    e("v_xor_b32 v18, v17, v16")
    e("v_lshlrev_b32 v18, 4, v18")
    e("v_lshl_add_u32 v18, v16, 12, v18")
    e("v_mov_b32 v22, v18")
    e("v_add_u32 v%d, s35, v18" % vKoff)
    e("v_add_u32 v%d, 0x10000, v%d" % (vKoff2, vKoff))
    e("s_lshl_b32 s35, s7, 12")
    e("s_add_u32 s35, s35, s34")
    e("v_lshlrev_b32 v18, 4, v17")
    e("v_lshl_add_u32 v18, v16, 14, v18")
    e("v_add_u32 v%d, s35, v18" % vVoff)
    e("v_add_u32 v%d, 0x10000, v%d" % (vVoff2, vVoff))
    e("s_mul_i32 s%d, s6, %d" % (sHB, HALF_LDS))
    e("s_mul_i32 s35, s7, %d" % GRP)
    e("s_add_u32 s%d, s%d, s35" % (sKSTART, sHB))
    e("s_add_u32 s%d, s%d, %d" % (sKEND, sKSTART, NK * TILE))
    e("s_mov_b32 s%d, s%d" % (sKLDS, sKSTART))
    e("s_add_u32 s%d, s%d, %d" % (sVSTART, sKSTART, NK * TILE))
    e("s_add_u32 s%d, s%d, %d" % (sVEND, sVSTART, NV * TILE))
    e("s_mov_b32 s%d, s%d" % (sVLDS, sVSTART))
    e("v_and_b32 v16, 31, v0")
    e("v_lshrrev_b32 v17, 5, v0")
    e("s_lshl_b32 s35, s7, 5")
    e("s_waitcnt lgkmcnt(0)")
    stamp()
    cm("SRDs; K/V descriptors end at the stream's last key")
    e("s_add_u32 s33, s36, s37")
    e("s_lshl_b32 s33, s33, 12")
    e("s_mov_b32 s%d, s26" % sK)
    e("s_and_b32 s%d, s27, 0xffff" % (sK + 1))
    e("s_mov_b32 s%d, s33" % (sK + 2))
    e("s_mov_b32 s%d, 0x00020000" % (sK + 3))
    e("s_lshl_b32 s%d, s36, 12" % sKG)
    issue_K()
    e("s_mov_b32 s%d, s24" % sQ)
    e("s_and_b32 s%d, s25, 0xffff" % (sQ + 1))
    e("s_mov_b32 s%d, %d" % (sQ + 2, NBYTES))
    e("s_mov_b32 s%d, 0x00020000" % (sQ + 3))
    e("s_add_u32 s%d, s38, s35" % sQROW)
    cm("Q tile of this wave -> staging slot (K2,K3,V1,V2 slots of this half), K-tile layout")
    e("s_lshl_b32 s35, s%d, 12" % sQROW)
    e("s_add_u32 s35, s35, s34")
    e("v_add_u32 v22, s35, v22")
    e("s_add_u32 s35, s7, 2")
    e("s_cmp_ge_u32 s7, 2")
    e("s_cselect_b32 s33, 1, 0")
    e("s_add_u32 s35, s35, s33")
    e("s_mul_i32 s35, s35, %d" % TILE)
    e("s_add_u32 s%d, s%d, s35" % (sQST, sHB))
    e("s_mov_b32 s35, 0")
    for g in range(8):
        e("s_add_u32 m0, s%d, %d" % (sQST, g * GRP))
        e("s_nop 0")
        e("buffer_load_dwordx4 v22, s[%d:%d], s35 offen lds" % (sQ, sQ + 3))
        if g < 7:
            e("s_add_u32 s35, s35, 0x4000")
    e("s_add_u32 s33, s36, s37")
    e("s_lshl_b32 s33, s33, 12")
    e("v_add_u32 v18, s%d, v16" % sQROW)
    e("v_lshlrev_b32 v19, 12, v18")
    e("v_lshl_add_u32 v19, v17, 4, v19")
    e("v_add_u32 v19, s34, v19")
    issue_K()
    e("s_mov_b32 s%d, s28" % sV)
    e("s_and_b32 s%d, s29, 0xffff" % (sV + 1))
    e("s_mov_b32 s%d, s33" % (sV + 2))
    e("s_mov_b32 s%d, 0x00020000" % (sV + 3))
    e("s_lshl_b32 s%d, s36, 12" % sVG)
    issue_V()
    e("s_mov_b32 s%d, s30" % sO)
    e("s_and_b32 s%d, s31, 0xffff" % (sO + 1))
    e("s_mov_b32 s%d, %d" % (sO + 2, NBYTES))
    e("s_mov_b32 s%d, 0x00020000" % (sO + 3))
    cm("remaining setup while the first loads fly")
    e("v_lshlrev_b32 v%d, 2, v17" % vH4)
    e("v_lshrrev_b32 v20, 2, v16")
    e("v_and_b32 v21, 3, v16")
    e("v_mul_u32_u24 v20, %d, v20" % GRP)
    e("v_lshl_add_u32 v20, v21, 8, v20")
    e("v_xor_b32 v21, v21, v17")
    e("v_lshlrev_b32 v21, 4, v21")
    e("v_add_u32 v%d, v20, v21" % vKbE)
    e("v_xor_b32 v21, 32, v21")
    e("v_add_u32 v%d, v20, v21" % vKbO)
    e("v_bfe_u32 v20, v0, 2, 2")
    e("v_mul_u32_u24 v20, %d, v20" % GRP)
    e("v_lshl_add_u32 v20, v17, 8, v20")
    e("v_bfe_u32 v21, v0, 4, 1")
    e("v_lshl_add_u32 v20, v21, 5, v20")
    e("v_and_b32 v21, 3, v0")
    e("v_lshl_add_u32 v20, v21, 3, v20")
    e("s_lshl_b32 s%d, s6, 7" % sSO01)
    e("s_xor_b32 s%d, s%d, 128" % (sSO23, sSO01))
    e("v_add_u32 v%d, s%d, v20" % (vVb01, sSO01))
    e("v_add_u32 v%d, s%d, v20" % (vVb23, sSO23))
    c = (128 ** -0.5) * math.log2(math.e)
    e("s_mov_b32 s%d, 0x%08x" % (sC, struct.unpack("<I", struct.pack("<f", c))[0]))
    e("s_mov_b32 s%d, 0x43800000" % sTHR)
    e("s_mov_b32 s%d, s%d" % (sKRDS, sHB))
    e("s_add_u32 s%d, s%d, %d" % (sKRDE, sHB, NK * TILE))
    e("s_mov_b32 s%d, s%d" % (sKRD, sKRDS))
    e("s_mov_b32 s%d, s%d" % (sVRDS, sKRDE))
    e("s_add_u32 s%d, s%d, %d" % (sVRDE, sVRDS, NV * TILE))
    e("s_mov_b32 s%d, s%d" % (sVRD, sVRDS))
    e("s_add_u32 s%d, s37, 31" % sN)
    e("s_lshr_b32 s%d, s%d, 5" % (sN, sN))
    e("s_and_b32 s%d, s39, 0xffff" % sQLIM)
    e("v_cmp_gt_u32 vcc, s%d, v18" % sQLIM)
    e("v_mov_b32 v20, 0x7ff00000")
    e("s_bfe_u32 s%d, s39, 0x10010" % sMERGE)
    e("s_lshr_b32 s%d, s39, 20" % sNIT)
    e("v_cndmask_b32 v%d, v20, v19, vcc" % vOut)
    e("s_sub_u32 s%d, s%d, 2" % (sNM2, sN))
    e("s_sub_u32 s35, s%d, 1" % sN)
    e("s_lshl_b32 s35, s35, 5")
    e("s_sub_u32 s%d, s37, s35" % sNV)
    e("s_mov_b32 s%d, 0" % sT)
    e("s_mov_b32 s%d, 0" % sH)
    for i in range(64):
        e("v_mov_b32 v%d, 0" % (vO + i))
    e("v_mov_b32 v%d, 0" % vL)
    k_addr()
    stamp()
    cm("P1: K0 and Q landed")
    e("v_add_u32 v20, s%d, v%d" % (sQST, vKbE))
    e("v_add_u32 v21, s%d, v%d" % (sQST, vKbO))
    e("s_waitcnt vmcnt(4)")
    e("s_barrier")
    stamp()
    e("s_cmp_ge_u32 s%d, s%d" % (sQROW, sQLIM))
    e("s_cbranch_scc1 L_idle_p2")
    ds.reset()
    for s in range(8):
        d = vQ + 4 * s
        e("ds_read_b128 %s, v%d offset:%d" % (vr(d, 4), 21 if (s & 1) else 20, (s >> 1) * 64))
        ds.issue(range(d, d + 4))
        k_read(s)
    for s in range(8):
        qk_mfma(s)
    k_addr()
    cm("P2: K1 landed; Q staging slots are free after this barrier")
    e("s_waitcnt vmcnt(2)")
    e("s_barrier")
    stamp()
    issue_K()
    issue_K()
    issue_V()
    cond_header(1, 6)
    cm("row max of tile 0")
    t0, t1 = vT, vT + 1
    e("v_max3_f32 v%d, v%d, v%d, v%d" % (t0, vS, vS + 1, vS + 2))
    for i in range(3, 15, 2):
        e("v_max3_f32 v%d, v%d, v%d, v%d" % (t0, t0, vS + i, vS + i + 1))
    e("v_max_f32 v%d, v%d, v%d" % (t0, t0, vS + 15))
    e("v_mov_b32 v%d, v%d" % (t1, t0))
    e("s_nop 1")
    e("v_permlane32_swap_b32 v%d, v%d" % (t0, t1))
    e("v_max_f32 v%d, v%d, v%d" % (t0, t0, t1))
    e("v_mul_f32 v%d, s%d, v%d" % (vMC, sC, t0))
    for g in GAPS_B:
        for f in g:
            f()
        e("s_nop 0")
    cm("main loop")
    lab("L_loop")
    ds.reset(KPEND)
    cond_header(0)
    v_addr()
    ds.need(range(vK, vK + 4))
    e("s_cmp_eq_u32 s%d, s%d" % (sT, sNM2))
    e("s_cbranch_scc1 L_mask")
    qk_mfma(0)
    lab("L_mask_ret")
    for s in range(8):
        if s > 0:
            qk_mfma(s)
        for f in GAPS_A[s]:
            f()
        if s == 1: KD1()
        if s == 4: KD2()
    check(0)
    cond_header(1)
    k_addr()
    for m in range(8):
        pv_mfma(m)
        for f in GAPS_B[m]:
            f()
        if m == 0: VD1()
        if m == 1: VD2()
    e("s_add_u32 s%d, s%d, 1" % (sT, sT))
    e("s_cmp_le_u32 s%d, s%d" % (sT, sNM2))
    e("s_cbranch_scc1 L_loop")
    cm("tail iteration")
    ds.reset(KPEND)
    cond_header(0)
    v_addr()
    for s in range(8):
        for f in GAPS_A[s]:
            f()
        e("s_nop 0")
    check(1)
    e("s_nop 1")
    for m in range(8):
        pv_mfma(m)
    lab("L_service")
    e("s_cmp_ge_u32 s%d, s%d" % (sH, sNIT))
    e("s_cbranch_scc1 L_epi")
    e("s_barrier")
    e("s_add_u32 s%d, s%d, 1" % (sH, sH))
    e("s_branch L_service")
    lab("L_idle_p2")
    e("s_waitcnt vmcnt(2)")
    e("s_barrier")
    issue_K()
    issue_K()
    issue_V()
    lab("L_idle_loop")
    e("s_waitcnt vmcnt(4)")
    e("s_barrier")
    issue_K()
    issue_V()
    e("s_add_u32 s%d, s%d, 1" % (sH, sH))
    e("s_cmp_lt_u32 s%d, s%d" % (sH, sNIT))
    e("s_cbranch_scc1 L_idle_loop")
    cm("epilogue")
    lab("L_epi")
    stamp()
    e("s_waitcnt vmcnt(0)")
    e("s_cmp_ge_u32 s%d, s%d" % (sQROW, sQLIM))
    e("s_cbranch_scc1 L_idle_epi")
    e("s_nop 7")
    e("v_mov_b32 v%d, v%d" % (t0, vL))
    e("s_nop 1")
    e("v_permlane32_swap_b32 v%d, v%d" % (vL, t0))
    e("v_add_f32 v%d, v%d, v%d" % (vL, vL, t0))
    e("s_cmp_eq_u32 s%d, 0" % sMERGE)
    e("s_cbranch_scc1 L_nomerge")
    cm("merge with partner wave (wave ^ 4)")
    e("s_barrier")
    e("s_mul_i32 s35, s3, %d" % TILE)
    e("v_lshlrev_b32 v%d, 4, v0" % t0)
    e("v_add_u32 v%d, s35, v%d" % (t0, t0))
    e("v_lshlrev_b32 v%d, 3, v0" % t1)
    e("v_add_u32 v%d, s35, v%d" % (t1, t1))
    for i in range(8):
        e("ds_write_b128 v%d, %s offset:%d" % (t0, vr(vO + 32 + 4 * i, 4), i * 1024))
    e("v_mov_b32 v%d, v%d" % (vT + 2, vMC))
    e("v_mov_b32 v%d, v%d" % (vT + 3, vL))
    e("ds_write_b64 v%d, v[%d:%d] offset:8192" % (t1, vT + 2, vT + 3))
    e("s_xor_b32 s35, s3, 4")
    e("s_mul_i32 s35, s35, %d" % TILE)
    e("v_lshlrev_b32 v%d, 4, v0" % t0)
    e("v_add_u32 v%d, s35, v%d" % (t0, t0))
    e("v_lshlrev_b32 v%d, 3, v0" % t1)
    e("v_add_u32 v%d, s35, v%d" % (t1, t1))
    e("s_waitcnt lgkmcnt(0)")
    e("s_barrier")
    e("ds_read_b64 v[%d:%d], v%d offset:8192" % (vT + 2, vT + 3, t1))
    for i in range(8):
        e("ds_read_b128 %s, v%d offset:%d" % (vr(vK + 4 * i, 4), t0, i * 1024))
    e("s_waitcnt lgkmcnt(8)")
    mo, lo, mn, fa, fb = vT + 2, vT + 3, vT + 4, vT + 5, vT + 6
    e("v_max_f32 v%d, v%d, v%d" % (mn, vMC, mo))
    e("v_sub_f32 v%d, v%d, v%d" % (fa, vMC, mn))
    e("v_sub_f32 v%d, v%d, v%d" % (fb, mo, mn))
    e("v_exp_f32 v%d, v%d" % (fa, fa))
    e("v_exp_f32 v%d, v%d" % (fb, fb))
    e("s_nop 0")
    e("v_mul_f32 v%d, v%d, v%d" % (vL, vL, fa))
    e("v_fmac_f32 v%d, v%d, v%d" % (vL, lo, fb))
    e("v_rcp_f32 v%d, v%d" % (vL, vL))
    e("s_nop 0")
    e("v_mul_f32 v%d, v%d, v%d" % (fa, fa, vL))
    e("v_mul_f32 v%d, v%d, v%d" % (fb, fb, vL))
    for i in range(32):
        e("v_mul_f32 v%d, v%d, v%d" % (vO + i, vO + i, fa))
    e("s_waitcnt lgkmcnt(0)")
    for i in range(32):
        e("v_fmac_f32 v%d, v%d, v%d" % (vO + i, vK + i, fb))
    e("s_branch L_store")
    lab("L_nomerge")
    e("v_rcp_f32 v%d, v%d" % (fa, vL))
    e("s_nop 0")
    for i in range(64):
        e("v_mul_f32 v%d, v%d, v%d" % (vO + i, vO + i, fa))
    lab("L_store")
    stamp()
    def store_blocks(b0, so):
        for b in (b0, b0 + 1):
            for p in range(2):
                q = vE + ((b & 1) * 2 + p) * 4
                src = vO + 16 * b + 8 * p
                for k in range(4):
                    e("v_cvt_pk_bf16_f32 v%d, v%d, v%d" % (q + k, src + 2 * k, src + 2 * k + 1))
                e("s_nop 1")
                e("v_permlane32_swap_b32 v%d, v%d" % (q, q + 2))
                e("v_permlane32_swap_b32 v%d, v%d" % (q + 1, q + 3))
                e("buffer_store_dwordx4 %s, v%d, s[%d:%d], s%d offen offset:%d" % (vr(q, 4), vOut, sO, sO + 3, so, (b & 1) * 64 + p * 32))
    store_blocks(0, sSO01)
    e("s_cmp_lg_u32 s%d, 0" % sMERGE)
    e("s_cbranch_scc1 L_fin")
    e("s_nop 1")
    store_blocks(2, sSO23)
    lab("L_fin")
    if PROF:
        e("s_waitcnt vmcnt(0)")
    stamp_flush()
    e("s_endpgm")
    lab("L_idle_epi")
    e("s_cmp_eq_u32 s%d, 0" % sMERGE)
    e("s_cbranch_scc1 L_end")
    e("s_barrier")
    e("s_barrier")
    lab("L_end")
    e("s_endpgm")
    cm("tail-tile mask: S = (key < nv) ? 0 : -inf, then first QK MFMA accumulates onto it")
    lab("L_mask")
    e("s_sub_u32 s35, s%d, 1" % sNV)
    e("v_sub_u32 v%d, s35, v%d" % (vT, vH4))
    for r in range(16):
        cr = 8 * (r >> 2) + (r & 3)
        e("v_subrev_u32 v%d, %d, v%d" % (vS + r, cr, vT))
    for r in range(16):
        e("v_ashrrev_i32 v%d, 31, v%d" % (vS + r, vS + r))
    for r in range(16):
        e("v_and_b32 v%d, 0xff800000, v%d" % (vS + r, vS + r))
    e("s_nop 1")
    e("v_mfma_f32_32x32x16_bf16 %s, %s, %s, %s" % (vr(vS, 16), vr(vK, 4), vr(vQ, 4), vr(vS, 16)))
    e("s_branch L_mask_ret")
    cm("rare path: running max grew too much; rescale and recompute this tile's P")
    lab("L_rare")
    e("v_max3_f32 v%d, v%d, v%d, v%d" % (t0, vX, vX + 1, vX + 2))
    for i in range(3, 15, 2):
        e("v_max3_f32 v%d, v%d, v%d, v%d" % (t0, t0, vX + i, vX + i + 1))
    e("v_max_f32 v%d, v%d, v%d" % (t0, t0, vX + 15))
    e("v_mov_b32 v%d, v%d" % (t1, t0))
    e("s_nop 1")
    e("v_permlane32_swap_b32 v%d, v%d" % (t0, t1))
    e("v_max3_f32 v%d, v%d, v%d, 0" % (t0, t0, t1))
    e("v_add_f32 v%d, v%d, v%d" % (vMC, vMC, t0))
    e("v_exp_f32 v%d, -v%d" % (t1, t0))
    e("s_nop 0")
    e("v_mul_f32 v%d, v%d, v%d" % (vL, vL, t1))
    for i in range(64):
        e("v_mul_f32 v%d, v%d, v%d" % (vO + i, vO + i, t1))
    for i in range(16):
        e("v_sub_f32 v%d, v%d, v%d" % (vX + i, vX + i, t0))
    e("v_mov_b32 v%d, 0" % vTS)
    for p in range(8):
        a, b = vT + 2 + (p & 1) * 2, vT + 3 + (p & 1) * 2
        e("v_exp_f32 v%d, v%d" % (a, vX + 2 * p))
        e("v_exp_f32 v%d, v%d" % (b, vX + 2 * p + 1))
        e("s_nop 0")
        e("v_add_f32 v%d, v%d, v%d" % (vTS, vTS, a))
        e("v_add_f32 v%d, v%d, v%d" % (vTS, vTS, b))
        e("v_cvt_pk_bf16_f32 v%d, v%d, v%d" % (vP + p, a, b))
    e("s_nop 1")
    e("s_cmp_eq_u32 s%d, 0" % sRET)
    e("s_cbranch_scc1 L_ret0")
    e("s_branch L_ret1")
    out.append(".p2align 6")
    out.append(".type L_table,@object")
    lab("L_table")
    for r in TABLE:
        out.append("    .long %d, %d, %d, 0x%x" % r)
    out.append(".size L_table, %d" % (16 * len(TABLE)))
    out.append('.section .rodata,"a"')
    out.append(".p2align 6")
    out.append(".amdhsa_kernel %s_kernel" % NAME)
    out.append("  .amdhsa_next_free_vgpr 256")
    out.append("  .amdhsa_next_free_sgpr 96")
    out.append("  .amdhsa_accum_offset 256")
    out.append("  .amdhsa_group_segment_fixed_size 0")
    out.append("  .amdhsa_kernarg_size 56")
    out.append("  .amdhsa_user_sgpr_count 2")
    out.append("  .amdhsa_user_sgpr_kernarg_segment_ptr 1")
    out.append("  .amdhsa_system_sgpr_workgroup_id_x 1")
    out.append(".end_amdhsa_kernel")

gen()
dst = sys.argv[1] if len(sys.argv) > 1 else "cdna_kernels/%s.s" % NAME
open(dst, "w").write("\n".join(out) + "\n")
print("wrote", dst, len(out), "lines")
```

```python
import sys, math, struct

NAME = "standalone__ragged_sequences_packed_sequences__ragged"
CU = [0, 400, 516, 964, 1456, 1702, 1900, 2021, 2266]
T = 2266
ROWB = 4096
NBYTES = T * ROWB

XF = set(a[4:] for a in sys.argv if a.startswith("--x-"))
sys.argv = [a for a in sys.argv if not a.startswith("--x-")]
PROF = "--prof" in sys.argv
if PROF: sys.argv.remove("--prof")

GRP = 1088
TILE = 8 * GRP
NS = 4
HALF_LDS = 2 * NS * TILE
XTRA = 2 * HALF_LDS
LDS_TOTAL = XTRA + 2 * TILE

def build_table():
    ent = []
    def seg(i):
        return CU[i], CU[i + 1] - CU[i]
    def ksplit(si, qt_starts):
        s, L = seg(si)
        nt = (L + 31) // 32
        nA = (nt + 1) // 2
        for q0 in qt_starts:
            a = (s, nA * 32, s + q0 * 32, s + L)
            b = (s + nA * 32, L - nA * 32, s + q0 * 32, s + L)
            ent.append((a, b, 1, q0))
    def qsplit(si):
        s, L = seg(si)
        ent.append(((s, L, s, s + L), (s, L, s + 128, s + L), 0, 0))
    qsplit(4)
    qsplit(7)
    ksplit(3, [0, 4, 8, 12])
    qsplit(5)
    ksplit(2, [0, 4, 8, 11])
    ksplit(0, [0, 4, 7, 10])
    s1, L1 = seg(1)
    s6, L6 = seg(6)
    ent.append(((s1, L1, s1, s1 + L1), (s6, L6, s6, s6 + L6), 0, 0))
    assert len(ent) == 16
    rows = []
    for j, (a, b, merge, q0) in enumerate(ent):
        nA = (a[1] + 31) // 32
        nB = (b[1] + 31) // 32
        assert nA >= 2 and nB >= 2
        niter = max(nA, nB)
        a = list(a); b = list(b)
        if merge:
            if j + 1 < 16 and ent[j + 1][2] and ent[j + 1][0][0] == a[0]:
                lim = ent[j + 1][0][2]
                a[3] = min(a[3], lim); b[3] = min(b[3], lim)
        for h in (a, b):
            rows.append((h[0], h[1], h[2], h[3] | (merge << 16) | (niter << 20)))
    return rows

TABLE = build_table()

vKoff, vVoff, vKoff2, vVoff2 = 1, 2, 3, 4
vKbE, vKbO, vVb01, vVb23 = 5, 6, 7, 8
vOut, vMC, vL = 9, 10, 11
vTS2 = 12
vH4, vTS = 14, 15
vT = 16
vP = 24
vX = 32
vS = 48
vO = 64
vQ = 128
vK = 160
vV = 192
vE = 224
vM = 240

sQ, sK, sV, sO = 8, 12, 16, 20
sC, sTHR = 40, 42
sT, sN, sNIT, sNM2, sMERGE, sQLIM, sQROW = 43, 44, 45, 46, 47, 48, 49
sKG, sVG, sKW, sVW = 50, 51, 52, 53
sNV, sHB, sSO01, sSO23, sQST = 54, 55, 56, 57, 58
sLNK, sMASKA, sRAREA = 76, 78, 80
sONE = 63

out = []
def e(s):
    out.append("    " + s)
def lab(s):
    out.append(s + ":")
def cm(s):
    out.append("    ; " + s)
def vr(b, n):
    return "v[%d:%d]" % (b, b + n - 1)

def stamp():
    if not PROF: return
    e("s_memtime s[90:91]")
    e("s_waitcnt lgkmcnt(0)")
    e("s_mov_b32 m0, s92")
    e("s_nop 0")
    e("v_writelane_b32 v239, s90, m0")
    e("s_add_u32 s92, s92, 1")
def rstamp(lane):
    if not PROF: return
    e("s_memrealtime s[90:91]")
    e("s_waitcnt lgkmcnt(0)")
    e("v_writelane_b32 v239, s90, %d" % lane)
def stamp_flush():
    if not PROF: return
    stamp()
    rstamp(63)
    e("s_load_dwordx2 s[84:85], s[0:1], 48")
    e("s_waitcnt lgkmcnt(0)")
    e("s_and_b32 s85, s85, 0xffff")
    e("s_mov_b32 s86, 0x1000000")
    e("s_mov_b32 s87, 0x00020000")
    e("s_lshl_b32 s93, s2, 3")
    e("s_add_u32 s93, s93, s3")
    e("s_lshl_b32 s93, s93, 8")
    e("v_lshlrev_b32 v238, 2, v0")
    e("buffer_store_dword v239, v238, s[84:87], s93 offen")

class DS:
    def __init__(self):
        self.q = []
    def reset(self, q=None):
        self.q = list(q) if q else []
    def issue(self, regs):
        self.q.append(set(regs))
    def need(self, regs):
        regs = set(regs)
        last = -1
        for i, s in enumerate(self.q):
            if s & regs:
                last = i
        if last < 0:
            return
        n = len(self.q) - 1 - last
        n = min(n, 15)
        e("s_waitcnt lgkmcnt(%d)" % n)
        self.q = self.q[len(self.q) - n:] if n else []
ds = DS()

def KM(slot, j): return lambda: e("s_add_u32 m0, s%d, %d" % (sKW, slot * TILE + j * 4 * GRP))
def KL(j):
    def f():
        e("buffer_load_dwordx4 v%d, s[%d:%d], s%d offen lds" % (vKoff2 if j else vKoff, sK, sK + 3, sKG))
        if j: e("s_add_u32 s%d, s%d, 0x20000" % (sKG, sKG))
    return f
def VM(slot, j): return lambda: e("s_add_u32 m0, s%d, %d" % (sVW, slot * TILE + j * 4 * GRP))
def VL(j):
    def f():
        e("buffer_load_dwordx4 v%d, s[%d:%d], s%d offen lds" % (vVoff2 if j else vVoff, sV, sV + 3, sVG))
        if j: e("s_add_u32 s%d, s%d, 0x20000" % (sVG, sVG))
    return f
def issue_K(slot):
    KM(slot, 0)(); e("s_nop 0"); KL(0)(); KM(slot, 1)(); e("s_nop 0"); KL(1)()
def issue_V(slot):
    VM(slot, 0)(); e("s_nop 0"); VL(0)(); VM(slot, 1)(); e("s_nop 0"); VL(1)()

def k_read(s, slot):
    d = vK + 4 * s
    a = vKbO if (s & 1) else vKbE
    e("ds_read_b128 %s, v%d offset:%d" % (vr(d, 4), a, slot * TILE + (s >> 1) * 64))
    ds.issue(range(d, d + 4))

def v_read(kh, b, jj, slot, a01, a23):
    d = vV + (kh * 4 + b) * 4 + jj * 2
    a = a23 if b >= 2 else a01
    off = slot * TILE + kh * 4 * GRP + jj * 512 + (b & 1) * 64
    e("ds_read_b64_tr_b16 %s, v%d offset:%d" % (vr(d, 2), a, off))
    ds.issue(range(d, d + 2))

def qk_mfma(s):
    ds.need(list(range(vK + 4 * s, vK + 4 * s + 4)) + list(range(vQ + 4 * s, vQ + 4 * s + 4)))
    c = vr(vS, 16) if s > 0 else "0"
    e("v_mfma_f32_32x32x16_bf16 %s, %s, %s, %s" % (vr(vS, 16), vr(vK + 4 * s, 4), vr(vQ + 4 * s, 4), c))

def pv_mfma(m):
    kh, b = m >> 2, m & 3
    f = vV + (kh * 4 + b) * 4
    ds.need(range(f, f + 4))
    e("v_mfma_f32_32x32x16_bf16 %s, %s, %s, %s" % (vr(vO + 16 * b, 16), vr(f, 4), vr(vP + 4 * kh, 4), vr(vO + 16 * b, 16)))

def EXP(t, x): return lambda: e("v_exp_f32 v%d, v%d" % (vT + t, vX + x))
if "pkadd" in XF:
    def PADD(t): return lambda: e("v_pk_add_f32 %s, %s, %s" % (vr(vTS2, 2), vr(vTS2, 2), vr(vT + t, 2)))
    def PADD2(t0, t1): return lambda: e("v_pk_add_f32 %s, %s, %s" % (vr(vTS2, 2), vr(vT + t0, 2), vr(vT + t1, 2)))
else:
    def PADD(t): return lambda: (e("v_add_f32 v%d, v%d, v%d" % (vTS2, vTS2, vT + t)), e("v_add_f32 v%d, v%d, v%d" % (vTS2 + 1, vTS2 + 1, vT + t + 1)))
    def PADD2(t0, t1): return lambda: (e("v_add_f32 v%d, v%d, v%d" % (vTS2, vT + t0, vT + t1)), e("v_add_f32 v%d, v%d, v%d" % (vTS2 + 1, vT + t0 + 1, vT + t1 + 1)))
def CVT(p, t):
    def f():
        e("v_cvt_pk_bf16_f32 v%d, v%d, v%d" % (vP + p, vT + t, vT + t + 1))
        if "dot" in XF:
            if p == 0:
                e("v_dot2_f32_bf16 v%d, v%d, s%d, 0" % (vTS, vP + p, sONE))
            else:
                e("v_dot2c_f32_bf16 v%d, s%d, v%d" % (vTS, sONE, vP + p))
    return f
if "dot" in XF:
    def PADD(t): return lambda: None
    def PADD2(t0, t1): return lambda: None
if "pkfma" in XF:
    def PFMA(i): return lambda: e("v_pk_fma_f32 %s, %s, s[%d:%d], %s op_sel_hi:[1,0,0] neg_lo:[0,0,1] neg_hi:[0,0,1]" % (vr(vX + i, 2), vr(vS + i, 2), sC, sC + 1, vr(vMC, 2)))
else:
    def PFMA(i): return lambda: (e("v_fma_f32 v%d, v%d, s%d, -v%d" % (vX + i, vS + i, sC, vMC)), e("v_fma_f32 v%d, v%d, s%d, -v%d" % (vX + i + 1, vS + i + 1, sC, vMC)))

def gaps_A(vslot, kslot, a01=vVb01, a23=vVb23, dma=True):
    def VRD(kh, b): return lambda: (v_read(kh, b, 0, vslot, a01, a23), v_read(kh, b, 1, vslot, a01, a23))
    g = [
        [VRD(0, 0), EXP(0, 6), EXP(1, 7)],
        [VRD(0, 1), EXP(2, 8), PADD(0), CVT(3, 0)],
        [VRD(0, 2), EXP(3, 9), EXP(4, 10)],
        [VRD(0, 3), EXP(5, 11), PADD(2), CVT(4, 2)],
        [VRD(1, 0), EXP(6, 12), PADD(4), CVT(5, 4)],
        [VRD(1, 1), EXP(7, 13), EXP(0, 14)],
        [VRD(1, 2), EXP(1, 15), PADD(6), CVT(6, 6)],
        [VRD(1, 3), PADD(0), CVT(7, 0)],
    ]
    if dma:
        g[2] = [KM(kslot, 0)] + g[2] + [KL(0)]
        g[5] = [KM(kslot, 1)] + g[5] + [KL(1)]
    return g

def gaps_B(kslot, vslot, dma=True):
    def KRD(s): return lambda: k_read(s, kslot)
    g = [
        [KRD(0), KRD(1)],
        [KRD(2), KRD(3)],
        [KRD(4), KRD(5), PFMA(0), PFMA(2)],
        [KRD(6), KRD(7), PFMA(4), PFMA(6), EXP(2, 0), EXP(3, 1)],
        [PFMA(8), PFMA(10), EXP(4, 2), EXP(5, 3)],
        [PFMA(12), PFMA(14), CVT(0, 2), PADD2(2, 4)],
        [EXP(6, 4), EXP(7, 5), CVT(1, 4)],
        [PADD(6), CVT(2, 6)],
    ]
    if dma:
        g[0] = [VM(vslot, 0)] + g[0] + [VL(0)]
        g[1] = [VM(vslot, 1)] + g[1] + [VL(1)]
    return g

KPEND = [set(range(vK + 4 * s, vK + 4 * s + 4)) for s in range(8)]
stubs = []
def check(tag):
    if "dot" in XF:
        e("s_nop 2")
    else:
        e("v_add_f32 v%d, v%d, v%d" % (vTS, vTS2, vTS2 + 1))
    e("v_cmp_lt_f32 vcc, s%d, v%d" % (sTHR, vTS))
    e("s_cbranch_vccnz L_rs%s" % tag)
    lab("L_ret%s" % tag)
    e("v_add_f32 v%d, v%d, v%d" % (vL, vL, vTS))
    stubs.append(tag)

def header(vm=6):
    e("s_waitcnt vmcnt(%d) lgkmcnt(0)" % vm)
    e("s_barrier")
    stamp()

def gen():
    out.append("; @launch grid=(256,1,1) block=(512,1,1) lds=%d" % LDS_TOTAL)
    out.append('.amdgcn_target "amdgcn-amd-amdhsa--gfx950"')
    out.append(".text")
    out.append(".globl %s_kernel" % NAME)
    out.append(".p2align 8")
    out.append(".type %s_kernel,@function" % NAME)
    lab("%s_kernel" % NAME)
    e("s_cmp_ge_u32 s2, 256")
    e("s_cbranch_scc1 L_end")
    if PROF:
        e("s_mov_b32 s92, 0")
        e("v_mov_b32 v239, 0")
    rstamp(62)
    stamp()
    e("s_load_dwordx4 s[24:27], s[0:1], 0")
    e("s_load_dwordx2 s[28:29], s[0:1], 16")
    e("s_load_dwordx2 s[30:31], s[0:1], 32")
    e("v_lshrrev_b32 v1, 6, v0")
    e("s_and_b32 s4, s2, 7")
    e("v_readfirstlane_b32 s3, v1")
    e("s_lshl_b32 s4, s4, 1")
    e("s_bfe_u32 s5, s2, 0x10003")
    e("s_or_b32 s4, s4, s5")
    e("s_lshr_b32 s5, s2, 4")
    e("s_lshr_b32 s6, s3, 2")
    e("s_and_b32 s7, s3, 3")
    e("s_lshl_b32 s5, s5, 1")
    e("s_add_u32 s5, s5, s6")
    e("s_lshl_b32 s5, s5, 4")
    e("s_getpc_b64 s[32:33]")
    lab("L_pc")
    e("s_add_u32 s%d, s32, L_rare-L_pc" % sRAREA)
    e("s_addc_u32 s%d, s33, 0" % (sRAREA + 1))
    e("s_add_u32 s32, s32, L_table-L_pc")
    e("s_addc_u32 s33, s33, 0")
    e("s_load_dwordx4 s[36:39], s[32:33], s5")
    cm("lane constants")
    e("v_and_b32 v0, 63, v0")
    e("s_lshl_b32 s34, s4, 8")
    e("v_lshrrev_b32 v16, 4, v0")
    e("v_and_b32 v17, 15, v0")
    e("s_lshl_b32 s35, s7, 14")
    e("s_add_u32 s35, s35, s34")
    e("v_xor_b32 v18, v17, v16")
    e("v_lshlrev_b32 v18, 4, v18")
    e("v_lshl_add_u32 v22, v16, 12, v18")
    e("v_add_u32 v%d, s35, v22" % vKoff)
    e("v_add_u32 v%d, 0x10000, v%d" % (vKoff2, vKoff))
    e("s_lshl_b32 s35, s7, 12")
    e("s_add_u32 s35, s35, s34")
    e("v_lshlrev_b32 v18, 4, v17")
    e("v_lshl_add_u32 v18, v16, 14, v18")
    e("v_add_u32 v%d, s35, v18" % vVoff)
    e("v_add_u32 v%d, 0x10000, v%d" % (vVoff2, vVoff))
    e("s_mul_i32 s%d, s6, %d" % (sHB, HALF_LDS))
    e("s_mul_i32 s35, s7, %d" % GRP)
    e("s_add_u32 s%d, s%d, s35" % (sKW, sHB))
    e("s_add_u32 s%d, s%d, %d" % (sVW, sKW, NS * TILE))
    e("s_add_u32 s33, s7, 4")
    e("s_cmp_eq_u32 s7, 1")
    e("s_cselect_b32 s33, 3, s33")
    e("s_mul_i32 s59, s33, %d" % TILE)
    e("v_and_b32 v16, 31, v0")
    e("v_lshrrev_b32 v17, 5, v0")
    e("s_lshl_b32 s35, s7, 5")
    e("s_waitcnt lgkmcnt(0)")
    stamp()
    cm("SRDs; K/V descriptors end at the stream's last key")
    e("s_add_u32 s33, s36, s37")
    e("s_lshl_b32 s33, s33, 12")
    e("s_mov_b32 s%d, s26" % sK)
    e("s_and_b32 s%d, s27, 0xffff" % (sK + 1))
    e("s_mov_b32 s%d, s33" % (sK + 2))
    e("s_mov_b32 s%d, 0x00020000" % (sK + 3))
    e("s_lshl_b32 s%d, s36, 12" % sKG)
    issue_K(0)
    e("s_mov_b32 s%d, s24" % sQ)
    e("s_and_b32 s%d, s25, 0xffff" % (sQ + 1))
    e("s_mov_b32 s%d, %d" % (sQ + 2, NBYTES))
    e("s_mov_b32 s%d, 0x00020000" % (sQ + 3))
    e("s_add_u32 s%d, s38, s35" % sQROW)
    cm("Q tile -> staging slot, K-tile layout; k-split WGs share it between the halves (each loads 4 of 8 groups)")
    e("s_bfe_u32 s%d, s39, 0x10010" % sMERGE)
    e("s_cmp_eq_u32 s%d, 0" % sMERGE)
    e("s_cselect_b32 s60, s6, 0")
    e("s_cselect_b32 s61, 0, s6")
    e("s_mul_i32 s35, s60, %d" % TILE)
    e("s_add_u32 s35, s35, %d" % XTRA)
    e("s_mul_i32 s60, s60, %d" % HALF_LDS)
    e("s_add_u32 s60, s60, s59")
    e("s_cmp_eq_u32 s7, 0")
    e("s_cselect_b32 s%d, s35, s60" % sQST)
    e("s_lshl_b32 s35, s%d, 12" % sQROW)
    e("s_add_u32 s35, s35, s34")
    e("v_add_u32 v22, s35, v22")
    e("s_lshl_b32 s35, s61, 16")
    e("s_mul_i32 s61, s61, %d" % (4 * GRP))
    e("s_add_u32 s61, s61, s%d" % sQST)
    for g in range(8):
        if g == 4:
            e("s_cmp_lg_u32 s%d, 0" % sMERGE)
            e("s_cbranch_scc1 L_qdone")
        e("s_add_u32 m0, s61, %d" % (g * GRP))
        e("s_nop 0")
        e("buffer_load_dwordx4 v22, s[%d:%d], s35 offen lds" % (sQ, sQ + 3))
        if g < 7:
            e("s_add_u32 s35, s35, 0x4000")
    lab("L_qdone")
    issue_K(1)
    e("s_mov_b32 s%d, s28" % sV)
    e("s_and_b32 s%d, s29, 0xffff" % (sV + 1))
    e("s_mov_b32 s%d, s33" % (sV + 2))
    e("s_mov_b32 s%d, 0x00020000" % (sV + 3))
    e("s_lshl_b32 s%d, s36, 12" % sVG)
    issue_V(0)
    if "early" in XF:
        issue_K(2)
        issue_V(1)
    e("s_mov_b32 s%d, s30" % sO)
    e("s_and_b32 s%d, s31, 0xffff" % (sO + 1))
    e("s_and_b32 s%d, s39, 0xffff" % sQLIM)
    e("s_lshl_b32 s%d, s%d, 12" % (sO + 2, sQLIM))
    e("s_mov_b32 s%d, 0x00020000" % (sO + 3))
    cm("remaining setup while the first loads fly")
    e("v_lshlrev_b32 v%d, 2, v17" % vH4)
    e("v_lshrrev_b32 v20, 2, v16")
    e("v_and_b32 v21, 3, v16")
    e("v_mul_u32_u24 v20, %d, v20" % GRP)
    e("v_lshl_add_u32 v20, v21, 8, v20")
    e("v_xor_b32 v21, v21, v17")
    e("v_lshlrev_b32 v21, 4, v21")
    e("v_add_u32 v22, v20, v21")
    e("v_xor_b32 v21, 32, v21")
    e("v_add_u32 v23, v20, v21")
    e("v_add_u32 v%d, s%d, v22" % (vKbE, sHB))
    e("v_add_u32 v%d, s%d, v23" % (vKbO, sHB))
    e("v_add_u32 v22, s%d, v22" % sQST)
    e("v_add_u32 v23, s%d, v23" % sQST)
    e("v_bfe_u32 v20, v0, 2, 2")
    e("v_mul_u32_u24 v20, %d, v20" % GRP)
    e("v_lshl_add_u32 v20, v17, 8, v20")
    e("v_bfe_u32 v21, v0, 4, 1")
    e("v_lshl_add_u32 v20, v21, 5, v20")
    e("v_and_b32 v21, 3, v0")
    e("v_lshl_add_u32 v20, v21, 3, v20")
    e("s_lshl_b32 s%d, s6, 7" % sSO01)
    e("s_xor_b32 s%d, s%d, 128" % (sSO23, sSO01))
    e("s_add_u32 s35, s%d, %d" % (sHB, NS * TILE))
    e("v_add_u32 v20, s35, v20")
    e("v_add_u32 v%d, s%d, v20" % (vVb01, sSO01))
    e("v_add_u32 v%d, s%d, v20" % (vVb23, sSO23))
    c = (128 ** -0.5) * math.log2(math.e)
    e("s_mov_b32 s%d, 0x%08x" % (sC, struct.unpack("<I", struct.pack("<f", c))[0]))
    e("s_mov_b32 s%d, s%d" % (sC + 1, sC))
    e("s_mov_b32 s%d, 0x43800000" % sTHR)
    e("s_mov_b32 s%d, 0x3f803f80" % sONE)
    e("s_add_u32 s%d, s37, 31" % sN)
    e("s_lshr_b32 s%d, s%d, 5" % (sN, sN))
    e("s_lshr_b32 s%d, s39, 20" % sNIT)
    e("s_sub_u32 s%d, s%d, 2" % (sNM2, sN))
    e("s_sub_u32 s35, s%d, 1" % sN)
    e("s_lshl_b32 s35, s35, 5")
    e("s_sub_u32 s%d, s37, s35" % sNV)
    e("s_mov_b32 s%d, 0" % sT)
    cm("tail-tile mask block: (key < nv) ? 0 : -inf ; used as the C input of the last tile's first QK MFMA")
    e("s_sub_u32 s35, s%d, 1" % sNV)
    e("v_sub_u32 v20, s35, v%d" % vH4)
    for r in range(16):
        cr = 8 * (r >> 2) + (r & 3)
        e("v_subrev_u32 v%d, %d, v20" % (vM + r, cr))
    for r in range(16):
        e("v_ashrrev_i32 v%d, 31, v%d" % (vM + r, vM + r))
    for r in range(16):
        e("v_and_b32 v%d, 0xff800000, v%d" % (vM + r, vM + r))
    for i in range(0, 64, 2):
        e("v_pk_mov_b32 %s, 0, 0" % vr(vO + i, 2))
    e("v_mov_b32 v%d, 0" % vL)
    stamp()
    cm("P1: K0 and Q landed")
    e("s_waitcnt vmcnt(%d)" % (8 if "early" in XF else 4))
    e("s_barrier")
    stamp()
    if "early" not in XF:
        issue_K(2)
        issue_V(1)
    e("s_cmp_ge_u32 s%d, s%d" % (sQROW, sQLIM))
    e("s_cbranch_scc1 L_idle_p2")
    ds.reset()
    for s in range(8):
        d = vQ + 4 * s
        e("ds_read_b128 %s, v%d offset:%d" % (vr(d, 4), 23 if (s & 1) else 22, (s >> 1) * 64))
        ds.issue(range(d, d + 4))
        k_read(s, 0)
    for s in range(8):
        qk_mfma(s)
    cm("P2: K1 landed; Q staging slots are free after this barrier")
    e("s_waitcnt vmcnt(6)")
    e("s_barrier")
    stamp()
    issue_K(3)
    issue_V(2)
    cm("row max of tile 0")
    t0, t1 = vT, vT + 1
    e("v_max3_f32 v%d, v%d, v%d, v%d" % (t0, vS, vS + 1, vS + 2))
    for i in range(3, 15, 2):
        e("v_max3_f32 v%d, v%d, v%d, v%d" % (t0, t0, vS + i, vS + i + 1))
    e("v_max_f32 v%d, v%d, v%d" % (t0, t0, vS + 15))
    e("v_mov_b32 v%d, v%d" % (t1, t0))
    e("s_nop 1")
    e("v_permlane32_swap_b32 v%d, v%d" % (t0, t1))
    e("v_max_f32 v%d, v%d, v%d" % (t0, t0, t1))
    e("v_mul_f32 v%d, s%d, v%d" % (vMC, sC, t0))
    for g in gaps_B(1, 0, dma=False):
        for f in g:
            f()
        e("s_nop 0")
    cm("main loop, unrolled over the 4 ring phases")
    for p in range(4):
        lab("L_loop%d" % p)
        header()
        ds.reset()
        e("s_cmp_lg_u32 s%d, s%d" % (sT, sNM2))
        e("s_cbranch_scc1 L_nm%d" % p)
        e("v_mfma_f32_32x32x16_bf16 %s, %s, %s, %s" % (vr(vS, 16), vr(vK, 4), vr(vQ, 4), vr(vM, 16)))
        e("s_branch L_m%d" % p)
        lab("L_nm%d" % p)
        qk_mfma(0)
        lab("L_m%d" % p)
        ga = gaps_A(p, p)
        for s in range(8):
            if s > 0:
                qk_mfma(s)
            for f in ga[s]:
                f()
        check(str(p))
        gb = gaps_B((p + 2) % 4, (p + 3) % 4)
        for m in range(8):
            pv_mfma(m)
            for f in gb[m]:
                f()
        e("s_add_u32 s%d, s%d, 1" % (sT, sT))
        e("s_cmp_gt_u32 s%d, s%d" % (sT, sNM2))
        if p < 3:
            e("s_cbranch_scc1 L_tail")
        else:
            e("s_cbranch_scc0 L_loop0")
    cm("tail iteration")
    lab("L_tail")
    e("s_and_b32 s35, s%d, 3" % sT)
    e("s_mul_i32 s35, s35, %d" % TILE)
    e("v_add_u32 v%d, s35, v%d" % (vE, vVb01))
    e("v_add_u32 v%d, s35, v%d" % (vE + 1, vVb23))
    header()
    ds.reset()
    for g in gaps_A(0, 0, vE, vE + 1, dma=False):
        for f in g:
            f()
        e("s_nop 0")
    check("t")
    e("s_nop 1")
    for m in range(8):
        pv_mfma(m)
    e("s_add_u32 s%d, s%d, 1" % (sT, sT))
    lab("L_service")
    e("s_cmp_ge_u32 s%d, s%d" % (sT, sNIT))
    e("s_cbranch_scc1 L_epi")
    e("s_barrier")
    e("s_add_u32 s%d, s%d, 1" % (sT, sT))
    e("s_branch L_service")
    cm("epilogue")
    lab("L_epi")
    stamp()
    e("v_mov_b32 v%d, v%d" % (t0, vL))
    e("s_waitcnt vmcnt(0)")
    e("s_nop 0")
    e("v_permlane32_swap_b32 v%d, v%d" % (vL, t0))
    e("v_add_f32 v%d, v%d, v%d" % (vL, vL, t0))
    fa, fb = vT + 4, vT + 6
    mo, lo, mn = vT + 2, vT + 3, vT
    e("s_cmp_eq_u32 s%d, 0" % sMERGE)
    e("s_cbranch_scc1 L_nomerge")
    cm("merge with partner wave (wave ^ 4): exchange through this wave's own DMA pieces of the K ring")
    e("v_lshlrev_b32 v%d, 4, v0" % t0)
    e("v_add_u32 v%d, s%d, v%d" % (t1, sKW, t0))
    e("s_add_u32 s33, s%d, %d" % (sKW, HALF_LDS))
    e("s_sub_u32 s35, s%d, %d" % (sKW, HALF_LDS))
    e("s_cmp_eq_u32 s6, 0")
    e("s_cselect_b32 s35, s33, s35")
    e("v_add_u32 v%d, s35, v%d" % (vE, t0))
    e("s_lshl_b32 s35, s3, 9")
    e("s_add_u32 s35, s35, %d" % XTRA)
    e("v_lshlrev_b32 v%d, 3, v0" % t0)
    e("v_add_u32 v%d, s35, v%d" % (vE + 1, t0))
    e("v_xor_b32 v%d, 0x800, v%d" % (vE + 2, vE + 1))
    e("s_nop 3")
    for i in range(8):
        e("ds_write_b128 v%d, %s offset:%d" % (t1, vr(vO + 32 + 4 * i, 4), (i >> 1) * TILE + (i & 1) * 4 * GRP))
    e("ds_write_b64 v%d, %s" % (vE + 1, vr(vMC, 2)))
    e("s_waitcnt lgkmcnt(0)")
    e("s_barrier")
    e("ds_read_b64 %s, v%d" % (vr(mo, 2), vE + 2))
    for i in range(8):
        e("ds_read_b128 %s, v%d offset:%d" % (vr(vK + 4 * i, 4), vE, (i >> 1) * TILE + (i & 1) * 4 * GRP))
    e("s_waitcnt lgkmcnt(8)")
    e("v_max_f32 v%d, v%d, v%d" % (mn, vMC, mo))
    e("v_sub_f32 v%d, v%d, v%d" % (fa, vMC, mn))
    e("v_sub_f32 v%d, v%d, v%d" % (fb, mo, mn))
    e("v_exp_f32 v%d, v%d" % (fa, fa))
    e("v_exp_f32 v%d, v%d" % (fb, fb))
    e("s_nop 0")
    e("v_mul_f32 v%d, v%d, v%d" % (vL, vL, fa))
    e("v_fmac_f32 v%d, v%d, v%d" % (vL, lo, fb))
    e("v_rcp_f32 v%d, v%d" % (vL, vL))
    e("s_nop 0")
    e("v_mul_f32 v%d, v%d, v%d" % (fa, fa, vL))
    e("v_mul_f32 v%d, v%d, v%d" % (fb, fb, vL))
    for i in range(0, 32, 2):
        e("v_pk_mul_f32 %s, %s, %s op_sel_hi:[1,0]" % (vr(vO + i, 2), vr(vO + i, 2), vr(fa, 2)))
    for i in range(0, 32, 2):
        if i % 4 == 0:
            e("s_waitcnt lgkmcnt(%d)" % (7 - i // 4))
        e("v_pk_fma_f32 %s, %s, %s, %s op_sel_hi:[1,0,1]" % (vr(vO + i, 2), vr(vK + i, 2), vr(fb, 2), vr(vO + i, 2)))
    e("s_branch L_store")
    lab("L_nomerge")
    e("v_rcp_f32 v%d, v%d" % (fa, vL))
    e("s_nop 7")
    for i in range(0, 64, 2):
        e("v_pk_mul_f32 %s, %s, %s op_sel_hi:[1,0]" % (vr(vO + i, 2), vr(vO + i, 2), vr(fa, 2)))
    lab("L_store")
    stamp()
    cm("stage the bf16 tile through this wave's own LDS pieces (rows of 272 B, 4 rows per piece), then store whole rows")
    e("s_cmp_lg_u32 s%d, 0" % sMERGE)
    e("s_cselect_b32 s60, s%d, s%d" % (sVW, sKW))
    e("s_cselect_b32 s61, 0, s%d" % sSO01)
    e("v_and_b32 v%d, 31, v0" % t0)
    e("v_lshrrev_b32 v%d, 3, v%d" % (t1, t0))
    e("v_mul_u32_u24 v%d, %d, v%d" % (t1, TILE, t1))
    e("v_bfe_u32 v%d, v%d, 2, 1" % (vT + 2, t0))
    e("v_mul_u32_u24 v%d, %d, v%d" % (vT + 2, 4 * GRP, vT + 2))
    e("v_and_b32 v%d, 3, v%d" % (vT + 3, t0))
    e("v_mul_u32_u24 v%d, 272, v%d" % (vT + 3, vT + 3))
    e("v_add3_u32 v%d, v%d, v%d, v%d" % (t1, t1, vT + 2, vT + 3))
    e("v_lshrrev_b32 v%d, 5, v0" % t0)
    e("v_lshl_add_u32 v%d, v%d, 4, v%d" % (t1, t0, t1))
    e("v_add_u32 v%d, s60, v%d" % (t1, t1))
    e("v_add_u32 v%d, s61, v%d" % (vE, t1))
    e("v_add_u32 v%d, s%d, v%d" % (vE + 1, sSO23, t1))
    def stage_blocks(b0, a):
        for b in (b0, b0 + 1):
            for p in range(2):
                q = vV + ((b & 3) * 2 + p) * 4
                src = vO + 16 * b + 8 * p
                for k in range(4):
                    e("v_cvt_pk_bf16_f32 v%d, v%d, v%d" % (q + k, src + 2 * k, src + 2 * k + 1))
                e("s_nop 1")
                e("v_permlane32_swap_b32 v%d, v%d" % (q, q + 2))
                e("v_permlane32_swap_b32 v%d, v%d" % (q + 1, q + 3))
                e("ds_write_b128 v%d, %s offset:%d" % (a, vr(q, 4), (b & 1) * 64 + p * 32))
    stage_blocks(0, vE)
    e("s_lshl_b32 s35, s%d, 12" % sQROW)
    e("s_add_u32 s35, s35, s34")
    e("s_cmp_lg_u32 s%d, 0" % sMERGE)
    e("s_cbranch_scc1 L_st_merge")
    stage_blocks(2, vE + 1)
    e("v_lshrrev_b32 v%d, 4, v0" % t0)
    e("v_and_b32 v%d, 15, v0" % t1)
    e("v_lshlrev_b32 v%d, 4, v%d" % (t1, t1))
    e("v_mul_u32_u24 v%d, 272, v%d" % (vT + 2, t0))
    e("v_add3_u32 v%d, v%d, v%d, s60" % (vT + 2, vT + 2, t1))
    e("v_lshl_add_u32 v%d, v%d, 12, v%d" % (vT + 3, t0, t1))
    e("s_waitcnt lgkmcnt(0)")
    for k in range(8):
        e("ds_read_b128 %s, v%d offset:%d" % (vr(vK + 4 * k, 4), vT + 2, (k >> 1) * TILE + (k & 1) * 4 * GRP))
    for k in range(8):
        e("s_waitcnt lgkmcnt(%d)" % (7 - k))
        e("buffer_store_dwordx4 %s, v%d, s[%d:%d], s35 offen" % (vr(vK + 4 * k, 4), vT + 3, sO, sO + 3))
        if k < 7:
            e("s_add_u32 s35, s35, 0x4000")
    e("s_branch L_fin")
    lab("L_st_merge")
    e("v_lshrrev_b32 v%d, 3, v0" % t0)
    e("v_and_b32 v%d, 7, v0" % t1)
    e("v_lshlrev_b32 v%d, 4, v%d" % (t1, t1))
    e("v_and_b32 v%d, 3, v%d" % (vT + 2, t0))
    e("v_mul_u32_u24 v%d, 272, v%d" % (vT + 2, vT + 2))
    e("v_lshrrev_b32 v%d, 5, v0" % (vT + 3))
    e("v_mul_u32_u24 v%d, %d, v%d" % (vT + 3, 4 * GRP, vT + 3))
    e("v_add3_u32 v%d, v%d, v%d, v%d" % (vT + 2, vT + 2, vT + 3, t1))
    e("v_add_u32 v%d, s60, v%d" % (vT + 2, vT + 2))
    e("v_lshl_add_u32 v%d, v%d, 12, v%d" % (vT + 3, t0, t1))
    e("s_add_u32 s35, s35, s%d" % sSO01)
    e("s_waitcnt lgkmcnt(0)")
    for k in range(4):
        e("ds_read_b128 %s, v%d offset:%d" % (vr(vK + 4 * k, 4), vT + 2, k * TILE))
    for k in range(4):
        e("s_waitcnt lgkmcnt(%d)" % (3 - k))
        e("buffer_store_dwordx4 %s, v%d, s[%d:%d], s35 offen" % (vr(vK + 4 * k, 4), vT + 3, sO, sO + 3))
        if k < 3:
            e("s_add_u32 s35, s35, 0x8000")
    lab("L_fin")
    if PROF:
        e("s_waitcnt vmcnt(0)")
    stamp_flush()
    e("s_endpgm")
    cm("waves without q rows: only DMA duty and barriers")
    lab("L_idle_p2")
    e("s_waitcnt vmcnt(6)")
    e("s_barrier")
    issue_K(3)
    issue_V(2)
    lab("L_idle_loop")
    for p in range(4):
        e("s_waitcnt vmcnt(6)")
        e("s_barrier")
        issue_K(p)
        issue_V((p + 3) % 4)
        e("s_add_u32 s%d, s%d, 1" % (sT, sT))
        e("s_cmp_ge_u32 s%d, s%d" % (sT, sNIT))
        if p < 3:
            e("s_cbranch_scc1 L_idle_epi")
        else:
            e("s_cbranch_scc0 L_idle_loop")
    lab("L_idle_epi")
    e("s_waitcnt vmcnt(0)")
    e("s_cmp_eq_u32 s%d, 0" % sMERGE)
    e("s_cbranch_scc1 L_end")
    e("s_barrier")
    lab("L_end")
    e("s_endpgm")
    for tag in stubs:
        lab("L_rs%s" % tag)
        e("s_swappc_b64 s[%d:%d], s[%d:%d]" % (sLNK, sLNK + 1, sRAREA, sRAREA + 1))
        e("s_branch L_ret%s" % tag)
    cm("rare path: running max grew too much; rescale and recompute this tile's P")
    lab("L_rare")
    e("v_max3_f32 v%d, v%d, v%d, v%d" % (t0, vX, vX + 1, vX + 2))
    for i in range(3, 15, 2):
        e("v_max3_f32 v%d, v%d, v%d, v%d" % (t0, t0, vX + i, vX + i + 1))
    e("v_max_f32 v%d, v%d, v%d" % (t0, t0, vX + 15))
    e("v_mov_b32 v%d, v%d" % (t1, t0))
    e("s_nop 1")
    e("v_permlane32_swap_b32 v%d, v%d" % (t0, t1))
    e("v_max3_f32 v%d, v%d, v%d, 0" % (t0, t0, t1))
    e("v_add_f32 v%d, v%d, v%d" % (vMC, vMC, t0))
    e("v_exp_f32 v%d, -v%d" % (t1, t0))
    e("s_nop 0")
    e("v_mul_f32 v%d, v%d, v%d" % (vL, vL, t1))
    for i in range(64):
        e("v_mul_f32 v%d, v%d, v%d" % (vO + i, vO + i, t1))
    for i in range(16):
        e("v_sub_f32 v%d, v%d, v%d" % (vX + i, vX + i, t0))
    e("v_mov_b32 v%d, 0" % vTS)
    for p in range(8):
        a, b = vT + 2 + (p & 1) * 2, vT + 3 + (p & 1) * 2
        e("v_exp_f32 v%d, v%d" % (a, vX + 2 * p))
        e("v_exp_f32 v%d, v%d" % (b, vX + 2 * p + 1))
        e("s_nop 0")
        e("v_add_f32 v%d, v%d, v%d" % (vTS, vTS, a))
        e("v_add_f32 v%d, v%d, v%d" % (vTS, vTS, b))
        e("v_cvt_pk_bf16_f32 v%d, v%d, v%d" % (vP + p, a, b))
    e("s_nop 1")
    e("s_setpc_b64 s[%d:%d]" % (sLNK, sLNK + 1))
    out.append(".p2align 6")
    out.append(".type L_table,@object")
    lab("L_table")
    for r in TABLE:
        out.append("    .long %d, %d, %d, 0x%x" % r)
    out.append(".size L_table, %d" % (16 * len(TABLE)))
    out.append('.section .rodata,"a"')
    out.append(".p2align 6")
    out.append(".amdhsa_kernel %s_kernel" % NAME)
    out.append("  .amdhsa_next_free_vgpr 256")
    out.append("  .amdhsa_next_free_sgpr 96")
    out.append("  .amdhsa_accum_offset 256")
    out.append("  .amdhsa_group_segment_fixed_size 0")
    out.append("  .amdhsa_kernarg_size 56")
    out.append("  .amdhsa_user_sgpr_count 2")
    out.append("  .amdhsa_user_sgpr_kernarg_segment_ptr 1")
    out.append("  .amdhsa_system_sgpr_workgroup_id_x 1")
    out.append(".end_amdhsa_kernel")

assert XTRA % 4096 == 0, XTRA
gen()
dst = sys.argv[1] if len(sys.argv) > 1 else "cdna_kernels/%s.s" % NAME
open(dst, "w").write("\n".join(out) + "\n")
print("wrote", dst, len(out), "lines")
```

```python
import sys, math, struct

NAME = "standalone__ragged_sequences_packed_sequences__ragged"
CU = [0, 400, 516, 964, 1456, 1702, 1900, 2021, 2266]
T = 2266
ROWB = 4096
NBYTES = T * ROWB

XF = set(a[4:] for a in sys.argv if a.startswith("--x-"))
sys.argv = [a for a in sys.argv if not a.startswith("--x-")]
PROF = "--prof" in sys.argv
if PROF: sys.argv.remove("--prof")

GRP = 1088
TILE = 8 * GRP
NS = 4
HALF_LDS = 2 * NS * TILE
XTRA = 2 * HALF_LDS
LDS_TOTAL = XTRA + 2 * TILE

def build_table():
    ent = []
    def seg(i):
        return CU[i], CU[i + 1] - CU[i]
    def ksplit(si, qt_starts):
        s, L = seg(si)
        nt = (L + 31) // 32
        nA = (nt + 1) // 2
        for q0 in qt_starts:
            a = (s, nA * 32, s + q0 * 32, s + L)
            b = (s + nA * 32, L - nA * 32, s + q0 * 32, s + L)
            ent.append((a, b, 1, q0))
    def qsplit(si):
        s, L = seg(si)
        ent.append(((s, L, s, s + L), (s, L, s + 128, s + L), 0, 0))
    qsplit(4)
    qsplit(7)
    ksplit(3, [0, 4, 8, 12])
    qsplit(5)
    ksplit(2, [0, 4, 8, 11])
    ksplit(0, [0, 4, 7, 10])
    s1, L1 = seg(1)
    s6, L6 = seg(6)
    ent.append(((s1, L1, s1, s1 + L1), (s6, L6, s6, s6 + L6), 0, 0))
    assert len(ent) == 16
    rows = []
    for j, (a, b, merge, q0) in enumerate(ent):
        nA = (a[1] + 31) // 32
        nB = (b[1] + 31) // 32
        assert nA >= 2 and nB >= 2
        niter = max(nA, nB)
        a = list(a); b = list(b)
        if merge:
            if j + 1 < 16 and ent[j + 1][2] and ent[j + 1][0][0] == a[0]:
                lim = ent[j + 1][0][2]
                a[3] = min(a[3], lim); b[3] = min(b[3], lim)
        for h in (a, b):
            rows.append((h[0], h[1], h[2], h[3] | (merge << 16) | (niter << 20)))
    return rows

TABLE = build_table()

vKoff, vVoff, vKoff2, vVoff2 = 1, 2, 3, 4
vKbE, vKbO, vVb01, vVb23 = 5, 6, 7, 8
vOut, vMC, vL = 9, 10, 11
vTS2 = 12
vH4, vTS = 14, 15
vT = 16
vP = 24
vX = 32
vS = 48
vO = 64
vQ = 128
vK = 160
vV = 192
vE = 224
vM = 240

sQ, sK, sV, sO = 8, 12, 16, 20
sC, sTHR = 40, 42
sT, sN, sNIT, sNM2, sMERGE, sQLIM, sQROW = 43, 44, 45, 46, 47, 48, 49
sKG, sVG, sKW, sVW = 50, 51, 52, 53
sNV, sHB, sSO01, sSO23, sQST = 54, 55, 56, 57, 58
sLNK, sMASKA, sRAREA = 76, 78, 80
sONE = 63
sA, sB, sVD = 64, 65, 66
sKW2, sVW2 = 67, 68
vVa01, vVa23, vKaE, vKaO = 9, 14, 224, 225

out = []
def e(s):
    out.append("    " + s)
def lab(s):
    out.append(s + ":")
def cm(s):
    out.append("    ; " + s)
def vr(b, n):
    return "v[%d:%d]" % (b, b + n - 1)

def stamp():
    if not PROF: return
    e("s_memtime s[90:91]")
    e("s_waitcnt lgkmcnt(0)")
    e("s_mov_b32 m0, s92")
    e("s_nop 0")
    e("v_writelane_b32 v239, s90, m0")
    e("s_add_u32 s92, s92, 1")
def rstamp(lane):
    if not PROF: return
    e("s_memrealtime s[90:91]")
    e("s_waitcnt lgkmcnt(0)")
    e("v_writelane_b32 v239, s90, %d" % lane)
def stamp_flush():
    if not PROF: return
    stamp()
    rstamp(63)
    e("s_load_dwordx2 s[84:85], s[0:1], 48")
    e("s_waitcnt lgkmcnt(0)")
    e("s_and_b32 s85, s85, 0xffff")
    e("s_mov_b32 s86, 0x1000000")
    e("s_mov_b32 s87, 0x00020000")
    e("s_lshl_b32 s93, s2, 3")
    e("s_add_u32 s93, s93, s3")
    e("s_lshl_b32 s93, s93, 8")
    e("v_lshlrev_b32 v238, 2, v0")
    e("buffer_store_dword v239, v238, s[84:87], s93 offen")

class DS:
    def __init__(self):
        self.q = []
    def reset(self, q=None):
        self.q = list(q) if q else []
    def issue(self, regs):
        self.q.append(set(regs))
    def need(self, regs):
        regs = set(regs)
        last = -1
        for i, s in enumerate(self.q):
            if s & regs:
                last = i
        if last < 0:
            return
        n = len(self.q) - 1 - last
        n = min(n, 15)
        e("s_waitcnt lgkmcnt(%d)" % n)
        self.q = self.q[len(self.q) - n:] if n else []
ds = DS()

def KM(slot, j):
    if slot == "dyn":
        return (lambda: e("s_add_u32 m0, s%d, s%d" % (sKW, sA))) if j == 0 else (lambda: e("s_add_u32 m0, s%d, s%d" % (sKW2, sA)))
    return lambda: e("s_add_u32 m0, s%d, %d" % (sKW, slot * TILE + j * 4 * GRP))
def KL(j):
    def f():
        e("buffer_load_dwordx4 v%d, s[%d:%d], s%d offen lds" % (vKoff2 if j else vKoff, sK, sK + 3, sKG))
        if j: e("s_add_u32 s%d, s%d, 0x20000" % (sKG, sKG))
    return f
def VM(slot, j):
    if slot == "dyn":
        return (lambda: e("s_add_u32 m0, s%d, s%d" % (sVW, sVD))) if j == 0 else (lambda: e("s_add_u32 m0, s%d, s%d" % (sVW2, sVD)))
    return lambda: e("s_add_u32 m0, s%d, %d" % (sVW, slot * TILE + j * 4 * GRP))
def VL(j):
    def f():
        e("buffer_load_dwordx4 v%d, s[%d:%d], s%d offen lds" % (vVoff2 if j else vVoff, sV, sV + 3, sVG))
        if j: e("s_add_u32 s%d, s%d, 0x20000" % (sVG, sVG))
    return f
def issue_K(slot):
    KM(slot, 0)(); e("s_nop 0"); KL(0)(); KM(slot, 1)(); e("s_nop 0"); KL(1)()
def issue_V(slot):
    VM(slot, 0)(); e("s_nop 0"); VL(0)(); VM(slot, 1)(); e("s_nop 0"); VL(1)()

def k_read(s, slot):
    d = vK + 4 * s
    a = vKbO if (s & 1) else vKbE
    if slot == "dyn":
        a = vKaO if (s & 1) else vKaE
        slot = 0
    e("ds_read_b128 %s, v%d offset:%d" % (vr(d, 4), a, slot * TILE + (s >> 1) * 64))
    ds.issue(range(d, d + 4))

def v_read(kh, b, jj, slot, a01, a23):
    d = vV + (kh * 4 + b) * 4 + jj * 2
    a = a23 if b >= 2 else a01
    off = slot * TILE + kh * 4 * GRP + jj * 512 + (b & 1) * 64
    e("ds_read_b64_tr_b16 %s, v%d offset:%d" % (vr(d, 2), a, off))
    ds.issue(range(d, d + 2))

def qk_mfma(s):
    ds.need(list(range(vK + 4 * s, vK + 4 * s + 4)) + list(range(vQ + 4 * s, vQ + 4 * s + 4)))
    c = vr(vS, 16) if s > 0 else "0"
    e("v_mfma_f32_32x32x16_bf16 %s, %s, %s, %s" % (vr(vS, 16), vr(vK + 4 * s, 4), vr(vQ + 4 * s, 4), c))

def pv_mfma(m):
    kh, b = m >> 2, m & 3
    f = vV + (kh * 4 + b) * 4
    ds.need(range(f, f + 4))
    e("v_mfma_f32_32x32x16_bf16 %s, %s, %s, %s" % (vr(vO + 16 * b, 16), vr(f, 4), vr(vP + 4 * kh, 4), vr(vO + 16 * b, 16)))

def EXP(t, x): return lambda: e("v_exp_f32 v%d, v%d" % (vT + t, vX + x))
if "pkadd" in XF:
    def PADD(t): return lambda: e("v_pk_add_f32 %s, %s, %s" % (vr(vTS2, 2), vr(vTS2, 2), vr(vT + t, 2)))
    def PADD2(t0, t1): return lambda: e("v_pk_add_f32 %s, %s, %s" % (vr(vTS2, 2), vr(vT + t0, 2), vr(vT + t1, 2)))
else:
    def PADD(t): return lambda: (e("v_add_f32 v%d, v%d, v%d" % (vTS2, vTS2, vT + t)), e("v_add_f32 v%d, v%d, v%d" % (vTS2 + 1, vTS2 + 1, vT + t + 1)))
    def PADD2(t0, t1): return lambda: (e("v_add_f32 v%d, v%d, v%d" % (vTS2, vT + t0, vT + t1)), e("v_add_f32 v%d, v%d, v%d" % (vTS2 + 1, vT + t0 + 1, vT + t1 + 1)))
def CVT(p, t):
    def f():
        e("v_cvt_pk_bf16_f32 v%d, v%d, v%d" % (vP + p, vT + t, vT + t + 1))
        if "dot" in XF:
            if p == 0:
                e("v_dot2_f32_bf16 v%d, v%d, s%d, 0" % (vTS, vP + p, sONE))
            else:
                e("v_dot2c_f32_bf16 v%d, s%d, v%d" % (vTS, sONE, vP + p))
    return f
if "dot" in XF:
    def PADD(t): return lambda: None
    def PADD2(t0, t1): return lambda: None
if "pkfma" in XF:
    def PFMA(i): return lambda: e("v_pk_fma_f32 %s, %s, s[%d:%d], %s op_sel_hi:[1,0,0] neg_lo:[0,0,1] neg_hi:[0,0,1]" % (vr(vX + i, 2), vr(vS + i, 2), sC, sC + 1, vr(vMC, 2)))
else:
    def PFMA(i): return lambda: (e("v_fma_f32 v%d, v%d, s%d, -v%d" % (vX + i, vS + i, sC, vMC)), e("v_fma_f32 v%d, v%d, s%d, -v%d" % (vX + i + 1, vS + i + 1, sC, vMC)))

def gaps_A(vslot, kslot, a01=vVb01, a23=vVb23, dma=True):
    def VRD(kh, b): return lambda: (v_read(kh, b, 0, vslot, a01, a23), v_read(kh, b, 1, vslot, a01, a23))
    g = [
        [VRD(0, 0), EXP(0, 6), EXP(1, 7)],
        [VRD(0, 1), EXP(2, 8), PADD(0), CVT(3, 0)],
        [VRD(0, 2), EXP(3, 9), EXP(4, 10)],
        [VRD(0, 3), EXP(5, 11), PADD(2), CVT(4, 2)],
        [VRD(1, 0), EXP(6, 12), PADD(4), CVT(5, 4)],
        [VRD(1, 1), EXP(7, 13), EXP(0, 14)],
        [VRD(1, 2), EXP(1, 15), PADD(6), CVT(6, 6)],
        [VRD(1, 3), PADD(0), CVT(7, 0)],
    ]
    if dma:
        g[2] = [KM(kslot, 0)] + g[2] + [KL(0)]
        g[5] = [KM(kslot, 1)] + g[5] + [KL(1)]
    return g

def gaps_B(kslot, vslot, dma=True):
    def KRD(s): return lambda: k_read(s, kslot)
    g = [
        [KRD(0), KRD(1)],
        [KRD(2), KRD(3)],
        [KRD(4), KRD(5), PFMA(0), PFMA(2)],
        [KRD(6), KRD(7), PFMA(4), PFMA(6), EXP(2, 0), EXP(3, 1)],
        [PFMA(8), PFMA(10), EXP(4, 2), EXP(5, 3)],
        [PFMA(12), PFMA(14), CVT(0, 2), PADD2(2, 4)],
        [EXP(6, 4), EXP(7, 5), CVT(1, 4)],
        [PADD(6), CVT(2, 6)],
    ]
    if dma:
        g[0] = [VM(vslot, 0)] + g[0] + [VL(0)]
        g[1] = [VM(vslot, 1)] + g[1] + [VL(1)]
    return g

KPEND = [set(range(vK + 4 * s, vK + 4 * s + 4)) for s in range(8)]
stubs = []
def check(tag):
    if "dot" in XF:
        e("s_nop 2")
    else:
        e("v_add_f32 v%d, v%d, v%d" % (vTS, vTS2, vTS2 + 1))
    e("v_cmp_lt_f32 vcc, s%d, v%d" % (sTHR, vTS))
    e("s_cbranch_vccnz L_rs%s" % tag)
    lab("L_ret%s" % tag)
    e("v_add_f32 v%d, v%d, v%d" % (vL, vL, vTS))
    stubs.append(tag)

def header(vm=6):
    e("s_waitcnt vmcnt(%d) lgkmcnt(0)" % vm)
    e("s_barrier")
    stamp()

def gen():
    out.append("; @launch grid=(256,1,1) block=(512,1,1) lds=%d" % LDS_TOTAL)
    out.append('.amdgcn_target "amdgcn-amd-amdhsa--gfx950"')
    out.append(".text")
    out.append(".globl %s_kernel" % NAME)
    out.append(".p2align 8")
    out.append(".type %s_kernel,@function" % NAME)
    lab("%s_kernel" % NAME)
    e("s_cmp_ge_u32 s2, 256")
    e("s_cbranch_scc1 L_end")
    if PROF:
        e("s_mov_b32 s92, 0")
        e("v_mov_b32 v239, 0")
    rstamp(62)
    stamp()
    e("s_load_dwordx4 s[24:27], s[0:1], 0")
    e("s_load_dwordx2 s[28:29], s[0:1], 16")
    e("s_load_dwordx2 s[30:31], s[0:1], 32")
    e("v_lshrrev_b32 v1, 6, v0")
    e("s_and_b32 s4, s2, 7")
    e("v_readfirstlane_b32 s3, v1")
    e("s_lshl_b32 s4, s4, 1")
    e("s_bfe_u32 s5, s2, 0x10003")
    e("s_or_b32 s4, s4, s5")
    e("s_lshr_b32 s5, s2, 4")
    e("s_lshr_b32 s6, s3, 2")
    e("s_and_b32 s7, s3, 3")
    e("s_lshl_b32 s5, s5, 1")
    e("s_add_u32 s5, s5, s6")
    e("s_lshl_b32 s5, s5, 4")
    e("s_getpc_b64 s[32:33]")
    lab("L_pc")
    e("s_add_u32 s%d, s32, L_rare-L_pc" % sRAREA)
    e("s_addc_u32 s%d, s33, 0" % (sRAREA + 1))
    e("s_add_u32 s32, s32, L_table-L_pc")
    e("s_addc_u32 s33, s33, 0")
    e("s_load_dwordx4 s[36:39], s[32:33], s5")
    cm("lane constants")
    e("v_and_b32 v0, 63, v0")
    e("s_lshl_b32 s34, s4, 8")
    e("v_lshrrev_b32 v16, 4, v0")
    e("v_and_b32 v17, 15, v0")
    e("s_lshl_b32 s35, s7, 14")
    e("s_add_u32 s35, s35, s34")
    e("v_xor_b32 v18, v17, v16")
    e("v_lshlrev_b32 v18, 4, v18")
    e("v_lshl_add_u32 v22, v16, 12, v18")
    e("v_add_u32 v%d, s35, v22" % vKoff)
    e("v_add_u32 v%d, 0x10000, v%d" % (vKoff2, vKoff))
    e("s_lshl_b32 s35, s7, 12")
    e("s_add_u32 s35, s35, s34")
    e("v_lshlrev_b32 v18, 4, v17")
    e("v_lshl_add_u32 v18, v16, 14, v18")
    e("v_add_u32 v%d, s35, v18" % vVoff)
    e("v_add_u32 v%d, 0x10000, v%d" % (vVoff2, vVoff))
    e("s_mul_i32 s%d, s6, %d" % (sHB, HALF_LDS))
    e("s_mul_i32 s35, s7, %d" % GRP)
    e("s_add_u32 s%d, s%d, s35" % (sKW, sHB))
    e("s_add_u32 s%d, s%d, %d" % (sVW, sKW, NS * TILE))
    e("s_add_u32 s%d, s%d, %d" % (sKW2, sKW, 4 * GRP))
    e("s_add_u32 s%d, s%d, %d" % (sVW2, sVW, 4 * GRP))
    e("s_mov_b32 s%d, 0" % sA)
    e("s_mov_b32 s%d, %d" % (sB, 2 * TILE))
    e("s_mov_b32 s%d, %d" % (sVD, 3 * TILE))
    e("s_add_u32 s33, s7, 4")
    e("s_cmp_eq_u32 s7, 1")
    e("s_cselect_b32 s33, 3, s33")
    e("s_mul_i32 s59, s33, %d" % TILE)
    e("v_and_b32 v16, 31, v0")
    e("v_lshrrev_b32 v17, 5, v0")
    e("s_lshl_b32 s35, s7, 5")
    e("s_waitcnt lgkmcnt(0)")
    stamp()
    cm("SRDs; K/V descriptors end at the stream's last key")
    e("s_add_u32 s33, s36, s37")
    e("s_lshl_b32 s33, s33, 12")
    e("s_mov_b32 s%d, s26" % sK)
    e("s_and_b32 s%d, s27, 0xffff" % (sK + 1))
    e("s_mov_b32 s%d, s33" % (sK + 2))
    e("s_mov_b32 s%d, 0x00020000" % (sK + 3))
    e("s_lshl_b32 s%d, s36, 12" % sKG)
    issue_K(0)
    e("s_mov_b32 s%d, s24" % sQ)
    e("s_and_b32 s%d, s25, 0xffff" % (sQ + 1))
    e("s_mov_b32 s%d, %d" % (sQ + 2, NBYTES))
    e("s_mov_b32 s%d, 0x00020000" % (sQ + 3))
    e("s_add_u32 s%d, s38, s35" % sQROW)
    cm("Q tile -> staging slot, K-tile layout; k-split WGs share it between the halves (each loads 4 of 8 groups)")
    e("s_bfe_u32 s%d, s39, 0x10010" % sMERGE)
    e("s_cmp_eq_u32 s%d, 0" % sMERGE)
    e("s_cselect_b32 s60, s6, 0")
    e("s_cselect_b32 s61, 0, s6")
    e("s_mul_i32 s35, s60, %d" % TILE)
    e("s_add_u32 s35, s35, %d" % XTRA)
    e("s_mul_i32 s60, s60, %d" % HALF_LDS)
    e("s_add_u32 s60, s60, s59")
    e("s_cmp_eq_u32 s7, 0")
    e("s_cselect_b32 s%d, s35, s60" % sQST)
    e("s_lshl_b32 s35, s%d, 12" % sQROW)
    e("s_add_u32 s35, s35, s34")
    e("v_add_u32 v22, s35, v22")
    e("s_lshl_b32 s35, s61, 16")
    e("s_mul_i32 s61, s61, %d" % (4 * GRP))
    e("s_add_u32 s61, s61, s%d" % sQST)
    for g in range(8):
        if g == 4:
            e("s_cmp_lg_u32 s%d, 0" % sMERGE)
            e("s_cbranch_scc1 L_qdone")
        e("s_add_u32 m0, s61, %d" % (g * GRP))
        e("s_nop 0")
        e("buffer_load_dwordx4 v22, s[%d:%d], s35 offen lds" % (sQ, sQ + 3))
        if g < 7:
            e("s_add_u32 s35, s35, 0x4000")
    lab("L_qdone")
    issue_K(1)
    e("s_mov_b32 s%d, s28" % sV)
    e("s_and_b32 s%d, s29, 0xffff" % (sV + 1))
    e("s_mov_b32 s%d, s33" % (sV + 2))
    e("s_mov_b32 s%d, 0x00020000" % (sV + 3))
    e("s_lshl_b32 s%d, s36, 12" % sVG)
    issue_V(0)
    if "early" in XF:
        issue_K(2)
        issue_V(1)
    e("s_mov_b32 s%d, s30" % sO)
    e("s_and_b32 s%d, s31, 0xffff" % (sO + 1))
    e("s_and_b32 s%d, s39, 0xffff" % sQLIM)
    e("s_lshl_b32 s%d, s%d, 12" % (sO + 2, sQLIM))
    e("s_mov_b32 s%d, 0x00020000" % (sO + 3))
    cm("remaining setup while the first loads fly")
    e("v_lshlrev_b32 v%d, 2, v17" % vH4)
    e("v_lshrrev_b32 v20, 2, v16")
    e("v_and_b32 v21, 3, v16")
    e("v_mul_u32_u24 v20, %d, v20" % GRP)
    e("v_lshl_add_u32 v20, v21, 8, v20")
    e("v_xor_b32 v21, v21, v17")
    e("v_lshlrev_b32 v21, 4, v21")
    e("v_add_u32 v22, v20, v21")
    e("v_xor_b32 v21, 32, v21")
    e("v_add_u32 v23, v20, v21")
    e("v_add_u32 v%d, s%d, v22" % (vKbE, sHB))
    e("v_add_u32 v%d, s%d, v23" % (vKbO, sHB))
    e("v_add_u32 v22, s%d, v22" % sQST)
    e("v_add_u32 v23, s%d, v23" % sQST)
    e("v_bfe_u32 v20, v0, 2, 2")
    e("v_mul_u32_u24 v20, %d, v20" % GRP)
    e("v_lshl_add_u32 v20, v17, 8, v20")
    e("v_bfe_u32 v21, v0, 4, 1")
    e("v_lshl_add_u32 v20, v21, 5, v20")
    e("v_and_b32 v21, 3, v0")
    e("v_lshl_add_u32 v20, v21, 3, v20")
    e("s_lshl_b32 s%d, s6, 7" % sSO01)
    e("s_xor_b32 s%d, s%d, 128" % (sSO23, sSO01))
    e("s_add_u32 s35, s%d, %d" % (sHB, NS * TILE))
    e("v_add_u32 v20, s35, v20")
    e("v_add_u32 v%d, s%d, v20" % (vVb01, sSO01))
    e("v_add_u32 v%d, s%d, v20" % (vVb23, sSO23))
    c = (128 ** -0.5) * math.log2(math.e)
    e("s_mov_b32 s%d, 0x%08x" % (sC, struct.unpack("<I", struct.pack("<f", c))[0]))
    e("s_mov_b32 s%d, s%d" % (sC + 1, sC))
    e("s_mov_b32 s%d, 0x43800000" % sTHR)
    e("s_mov_b32 s%d, 0x3f803f80" % sONE)
    e("s_add_u32 s%d, s37, 31" % sN)
    e("s_lshr_b32 s%d, s%d, 5" % (sN, sN))
    e("s_lshr_b32 s%d, s39, 20" % sNIT)
    e("s_sub_u32 s%d, s%d, 2" % (sNM2, sN))
    e("s_sub_u32 s35, s%d, 1" % sN)
    e("s_lshl_b32 s35, s35, 5")
    e("s_sub_u32 s%d, s37, s35" % sNV)
    e("s_mov_b32 s%d, 0" % sT)
    cm("tail-tile mask block: (key < nv) ? 0 : -inf ; used as the C input of the last tile's first QK MFMA")
    e("s_sub_u32 s35, s%d, 1" % sNV)
    e("v_sub_u32 v20, s35, v%d" % vH4)
    for r in range(16):
        cr = 8 * (r >> 2) + (r & 3)
        e("v_subrev_u32 v%d, %d, v20" % (vM + r, cr))
    for r in range(16):
        e("v_ashrrev_i32 v%d, 31, v%d" % (vM + r, vM + r))
    for r in range(16):
        e("v_lshlrev_b32 v%d, 23, v%d" % (vM + r, vM + r))
    for i in range(0, 64, 2):
        e("v_pk_mov_b32 %s, 0, 0" % vr(vO + i, 2))
    e("v_mov_b32 v%d, 0" % vL)
    stamp()
    cm("P1: K0 and Q landed")
    e("s_waitcnt vmcnt(%d)" % (8 if "early" in XF else 4))
    e("s_barrier")
    stamp()
    if "early" not in XF:
        issue_K(2)
        issue_V(1)
    e("s_cmp_ge_u32 s%d, s%d" % (sQROW, sQLIM))
    e("s_cbranch_scc1 L_idle_p2")
    ds.reset()
    for s in range(8):
        d = vQ + 4 * s
        e("ds_read_b128 %s, v%d offset:%d" % (vr(d, 4), 23 if (s & 1) else 22, (s >> 1) * 64))
        ds.issue(range(d, d + 4))
        k_read(s, 0)
    for s in range(8):
        qk_mfma(s)
    cm("P2: K1 landed; Q staging slots are free after this barrier")
    e("s_waitcnt vmcnt(6)")
    e("s_barrier")
    stamp()
    issue_K(3)
    issue_V(2)
    cm("row max of tile 0")
    t0, t1 = vT, vT + 1
    e("v_max3_f32 v%d, v%d, v%d, v%d" % (t0, vS, vS + 1, vS + 2))
    for i in range(3, 15, 2):
        e("v_max3_f32 v%d, v%d, v%d, v%d" % (t0, t0, vS + i, vS + i + 1))
    e("v_max_f32 v%d, v%d, v%d" % (t0, t0, vS + 15))
    e("v_mov_b32 v%d, v%d" % (t1, t0))
    e("s_nop 1")
    e("v_permlane32_swap_b32 v%d, v%d" % (t0, t1))
    e("v_max_f32 v%d, v%d, v%d" % (t0, t0, t1))
    e("v_mul_f32 v%d, s%d, v%d" % (vMC, sC, t0))
    for g in gaps_B(1, 0, dma=False):
        for f in g:
            f()
        e("s_nop 0")
    cm("main loop")
    def advance():
        e("s_mov_b32 s%d, s%d" % (sB, sVD))
        e("s_mov_b32 s%d, s%d" % (sVD, sA))
        e("s_add_u32 s%d, s%d, %d" % (sA, sA, TILE))
        e("s_cmp_eq_u32 s%d, %d" % (sA, NS * TILE))
        e("s_cselect_b32 s%d, 0, s%d" % (sA, sA))
    lab("L_loop")
    e("v_add_u32 v%d, s%d, v%d" % (vVa01, sA, vVb01))
    e("v_add_u32 v%d, s%d, v%d" % (vVa23, sA, vVb23))
    header()
    ds.reset()
    e("s_cmp_lg_u32 s%d, s%d" % (sT, sNM2))
    e("s_cbranch_scc1 L_nm")
    e("v_mfma_f32_32x32x16_bf16 %s, %s, %s, %s" % (vr(vS, 16), vr(vK, 4), vr(vQ, 4), vr(vM, 16)))
    e("s_branch L_m")
    lab("L_nm")
    qk_mfma(0)
    lab("L_m")
    ga = gaps_A(0, "dyn", vVa01, vVa23)
    ga[7] = ga[7] + [lambda: e("v_add_u32 v%d, s%d, v%d" % (vKaE, sB, vKbE)), lambda: e("v_add_u32 v%d, s%d, v%d" % (vKaO, sB, vKbO))]
    for s in range(8):
        if s > 0:
            qk_mfma(s)
        for f in ga[s]:
            f()
    check("l")
    gb = gaps_B("dyn", "dyn")
    gb[7] = gb[7] + [advance]
    for m in range(8):
        pv_mfma(m)
        for f in gb[m]:
            f()
    e("s_add_u32 s%d, s%d, 1" % (sT, sT))
    e("s_cmp_le_u32 s%d, s%d" % (sT, sNM2))
    e("s_cbranch_scc1 L_loop")
    cm("tail iteration")
    e("v_add_u32 v%d, s%d, v%d" % (vVa01, sA, vVb01))
    e("v_add_u32 v%d, s%d, v%d" % (vVa23, sA, vVb23))
    header()
    ds.reset()
    for g in gaps_A(0, 0, vVa01, vVa23, dma=False):
        for f in g:
            f()
        e("s_nop 0")
    check("t")
    e("s_nop 1")
    for m in range(8):
        pv_mfma(m)
    e("s_add_u32 s%d, s%d, 1" % (sT, sT))
    lab("L_service")
    e("s_cmp_ge_u32 s%d, s%d" % (sT, sNIT))
    e("s_cbranch_scc1 L_epi")
    e("s_barrier")
    e("s_add_u32 s%d, s%d, 1" % (sT, sT))
    e("s_branch L_service")
    cm("epilogue")
    lab("L_epi")
    stamp()
    e("v_mov_b32 v%d, v%d" % (t0, vL))
    e("s_waitcnt vmcnt(0)")
    e("s_nop 0")
    e("v_permlane32_swap_b32 v%d, v%d" % (vL, t0))
    e("v_add_f32 v%d, v%d, v%d" % (vL, vL, t0))
    fa, fb = vT + 4, vT + 6
    mo, lo, mn = vT + 2, vT + 3, vT
    e("s_cmp_eq_u32 s%d, 0" % sMERGE)
    e("s_cbranch_scc1 L_nomerge")
    cm("merge with partner wave (wave ^ 4): exchange through this wave's own DMA pieces of the K ring")
    e("v_lshlrev_b32 v%d, 4, v0" % t0)
    e("v_add_u32 v%d, s%d, v%d" % (t1, sKW, t0))
    e("s_add_u32 s33, s%d, %d" % (sKW, HALF_LDS))
    e("s_sub_u32 s35, s%d, %d" % (sKW, HALF_LDS))
    e("s_cmp_eq_u32 s6, 0")
    e("s_cselect_b32 s35, s33, s35")
    e("v_add_u32 v%d, s35, v%d" % (vE, t0))
    e("s_lshl_b32 s35, s3, 9")
    e("s_add_u32 s35, s35, %d" % XTRA)
    e("v_lshlrev_b32 v%d, 3, v0" % t0)
    e("v_add_u32 v%d, s35, v%d" % (vE + 1, t0))
    e("v_xor_b32 v%d, 0x800, v%d" % (vE + 2, vE + 1))
    e("s_nop 3")
    for i in range(8):
        e("ds_write_b128 v%d, %s offset:%d" % (t1, vr(vO + 32 + 4 * i, 4), (i >> 1) * TILE + (i & 1) * 4 * GRP))
    e("ds_write_b64 v%d, %s" % (vE + 1, vr(vMC, 2)))
    e("s_waitcnt lgkmcnt(0)")
    e("s_barrier")
    e("ds_read_b64 %s, v%d" % (vr(mo, 2), vE + 2))
    for i in range(8):
        e("ds_read_b128 %s, v%d offset:%d" % (vr(vK + 4 * i, 4), vE, (i >> 1) * TILE + (i & 1) * 4 * GRP))
    e("s_waitcnt lgkmcnt(8)")
    e("v_max_f32 v%d, v%d, v%d" % (mn, vMC, mo))
    e("v_sub_f32 v%d, v%d, v%d" % (fa, vMC, mn))
    e("v_sub_f32 v%d, v%d, v%d" % (fb, mo, mn))
    e("v_exp_f32 v%d, v%d" % (fa, fa))
    e("v_exp_f32 v%d, v%d" % (fb, fb))
    e("s_nop 0")
    e("v_mul_f32 v%d, v%d, v%d" % (vL, vL, fa))
    e("v_fmac_f32 v%d, v%d, v%d" % (vL, lo, fb))
    e("v_rcp_f32 v%d, v%d" % (vL, vL))
    e("s_nop 0")
    e("v_mul_f32 v%d, v%d, v%d" % (fa, fa, vL))
    e("v_mul_f32 v%d, v%d, v%d" % (fb, fb, vL))
    for i in range(0, 32, 2):
        e("v_pk_mul_f32 %s, %s, %s op_sel_hi:[1,0]" % (vr(vO + i, 2), vr(vO + i, 2), vr(fa, 2)))
    for i in range(0, 32, 2):
        if i % 4 == 0:
            e("s_waitcnt lgkmcnt(%d)" % (7 - i // 4))
        e("v_pk_fma_f32 %s, %s, %s, %s op_sel_hi:[1,0,1]" % (vr(vO + i, 2), vr(vK + i, 2), vr(fb, 2), vr(vO + i, 2)))
    e("s_branch L_store")
    lab("L_nomerge")
    e("v_rcp_f32 v%d, v%d" % (fa, vL))
    e("s_nop 7")
    for i in range(0, 64, 2):
        e("v_pk_mul_f32 %s, %s, %s op_sel_hi:[1,0]" % (vr(vO + i, 2), vr(vO + i, 2), vr(fa, 2)))
    lab("L_store")
    stamp()
    cm("stage the bf16 tile through this wave's own LDS pieces (rows of 272 B, 4 rows per piece), then store whole rows")
    e("s_cmp_lg_u32 s%d, 0" % sMERGE)
    e("s_cselect_b32 s60, s%d, s%d" % (sVW, sKW))
    e("s_cselect_b32 s61, 0, s%d" % sSO01)
    e("v_and_b32 v%d, 31, v0" % t0)
    e("v_lshrrev_b32 v%d, 3, v%d" % (t1, t0))
    e("v_mul_u32_u24 v%d, %d, v%d" % (t1, TILE, t1))
    e("v_bfe_u32 v%d, v%d, 2, 1" % (vT + 2, t0))
    e("v_mul_u32_u24 v%d, %d, v%d" % (vT + 2, 4 * GRP, vT + 2))
    e("v_and_b32 v%d, 3, v%d" % (vT + 3, t0))
    e("v_mul_u32_u24 v%d, 272, v%d" % (vT + 3, vT + 3))
    e("v_add3_u32 v%d, v%d, v%d, v%d" % (t1, t1, vT + 2, vT + 3))
    e("v_lshrrev_b32 v%d, 5, v0" % t0)
    e("v_lshl_add_u32 v%d, v%d, 4, v%d" % (t1, t0, t1))
    e("v_add_u32 v%d, s60, v%d" % (t1, t1))
    e("v_add_u32 v%d, s61, v%d" % (vE, t1))
    e("v_add_u32 v%d, s%d, v%d" % (vE + 1, sSO23, t1))
    def stage_blocks(b0, a):
        for b in (b0, b0 + 1):
            for p in range(2):
                q = vV + ((b & 3) * 2 + p) * 4
                src = vO + 16 * b + 8 * p
                for k in range(4):
                    e("v_cvt_pk_bf16_f32 v%d, v%d, v%d" % (q + k, src + 2 * k, src + 2 * k + 1))
                e("s_nop 1")
                e("v_permlane32_swap_b32 v%d, v%d" % (q, q + 2))
                e("v_permlane32_swap_b32 v%d, v%d" % (q + 1, q + 3))
                e("ds_write_b128 v%d, %s offset:%d" % (a, vr(q, 4), (b & 1) * 64 + p * 32))
    stage_blocks(0, vE)
    e("s_lshl_b32 s35, s%d, 12" % sQROW)
    e("s_add_u32 s35, s35, s34")
    e("s_cmp_lg_u32 s%d, 0" % sMERGE)
    e("s_cbranch_scc1 L_st_merge")
    stage_blocks(2, vE + 1)
    e("v_lshrrev_b32 v%d, 4, v0" % t0)
    e("v_and_b32 v%d, 15, v0" % t1)
    e("v_lshlrev_b32 v%d, 4, v%d" % (t1, t1))
    e("v_mul_u32_u24 v%d, 272, v%d" % (vT + 2, t0))
    e("v_add3_u32 v%d, v%d, v%d, s60" % (vT + 2, vT + 2, t1))
    e("v_lshl_add_u32 v%d, v%d, 12, v%d" % (vT + 3, t0, t1))
    e("s_waitcnt lgkmcnt(0)")
    for k in range(8):
        e("ds_read_b128 %s, v%d offset:%d" % (vr(vK + 4 * k, 4), vT + 2, (k >> 1) * TILE + (k & 1) * 4 * GRP))
    for k in range(8):
        e("s_waitcnt lgkmcnt(%d)" % (7 - k))
        e("buffer_store_dwordx4 %s, v%d, s[%d:%d], s35 offen" % (vr(vK + 4 * k, 4), vT + 3, sO, sO + 3))
        if k < 7:
            e("s_add_u32 s35, s35, 0x4000")
    e("s_branch L_fin")
    lab("L_st_merge")
    e("v_lshrrev_b32 v%d, 3, v0" % t0)
    e("v_and_b32 v%d, 7, v0" % t1)
    e("v_lshlrev_b32 v%d, 4, v%d" % (t1, t1))
    e("v_and_b32 v%d, 3, v%d" % (vT + 2, t0))
    e("v_mul_u32_u24 v%d, 272, v%d" % (vT + 2, vT + 2))
    e("v_lshrrev_b32 v%d, 5, v0" % (vT + 3))
    e("v_mul_u32_u24 v%d, %d, v%d" % (vT + 3, 4 * GRP, vT + 3))
    e("v_add3_u32 v%d, v%d, v%d, v%d" % (vT + 2, vT + 2, vT + 3, t1))
    e("v_add_u32 v%d, s60, v%d" % (vT + 2, vT + 2))
    e("v_lshl_add_u32 v%d, v%d, 12, v%d" % (vT + 3, t0, t1))
    e("s_add_u32 s35, s35, s%d" % sSO01)
    e("s_waitcnt lgkmcnt(0)")
    for k in range(4):
        e("ds_read_b128 %s, v%d offset:%d" % (vr(vK + 4 * k, 4), vT + 2, k * TILE))
    for k in range(4):
        e("s_waitcnt lgkmcnt(%d)" % (3 - k))
        e("buffer_store_dwordx4 %s, v%d, s[%d:%d], s35 offen" % (vr(vK + 4 * k, 4), vT + 3, sO, sO + 3))
        if k < 3:
            e("s_add_u32 s35, s35, 0x8000")
    lab("L_fin")
    if PROF:
        e("s_waitcnt vmcnt(0)")
    stamp_flush()
    e("s_endpgm")
    cm("waves without q rows: only DMA duty and barriers")
    lab("L_idle_p2")
    e("s_waitcnt vmcnt(6)")
    e("s_barrier")
    issue_K(3)
    issue_V(2)
    lab("L_idle_loop")
    e("s_waitcnt vmcnt(6)")
    e("s_barrier")
    issue_K("dyn")
    issue_V("dyn")
    advance()
    e("s_add_u32 s%d, s%d, 1" % (sT, sT))
    e("s_cmp_lt_u32 s%d, s%d" % (sT, sNIT))
    e("s_cbranch_scc1 L_idle_loop")
    lab("L_idle_epi")
    e("s_waitcnt vmcnt(0)")
    e("s_cmp_eq_u32 s%d, 0" % sMERGE)
    e("s_cbranch_scc1 L_end")
    e("s_barrier")
    lab("L_end")
    e("s_endpgm")
    for tag in stubs:
        lab("L_rs%s" % tag)
        e("s_swappc_b64 s[%d:%d], s[%d:%d]" % (sLNK, sLNK + 1, sRAREA, sRAREA + 1))
        e("s_branch L_ret%s" % tag)
    cm("rare path: running max grew too much; rescale and recompute this tile's P")
    lab("L_rare")
    e("v_max3_f32 v%d, v%d, v%d, v%d" % (t0, vX, vX + 1, vX + 2))
    for i in range(3, 15, 2):
        e("v_max3_f32 v%d, v%d, v%d, v%d" % (t0, t0, vX + i, vX + i + 1))
    e("v_max_f32 v%d, v%d, v%d" % (t0, t0, vX + 15))
    e("v_mov_b32 v%d, v%d" % (t1, t0))
    e("s_nop 1")
    e("v_permlane32_swap_b32 v%d, v%d" % (t0, t1))
    e("v_max3_f32 v%d, v%d, v%d, 0" % (t0, t0, t1))
    e("v_add_f32 v%d, v%d, v%d" % (vMC, vMC, t0))
    e("v_exp_f32 v%d, -v%d" % (t1, t0))
    e("s_nop 0")
    e("v_mul_f32 v%d, v%d, v%d" % (vL, vL, t1))
    for i in range(64):
        e("v_mul_f32 v%d, v%d, v%d" % (vO + i, vO + i, t1))
    for i in range(16):
        e("v_sub_f32 v%d, v%d, v%d" % (vX + i, vX + i, t0))
    e("v_mov_b32 v%d, 0" % vTS)
    for p in range(8):
        a, b = vT + 2 + (p & 1) * 2, vT + 3 + (p & 1) * 2
        e("v_exp_f32 v%d, v%d" % (a, vX + 2 * p))
        e("v_exp_f32 v%d, v%d" % (b, vX + 2 * p + 1))
        e("s_nop 0")
        e("v_add_f32 v%d, v%d, v%d" % (vTS, vTS, a))
        e("v_add_f32 v%d, v%d, v%d" % (vTS, vTS, b))
        e("v_cvt_pk_bf16_f32 v%d, v%d, v%d" % (vP + p, a, b))
    e("s_nop 1")
    e("s_setpc_b64 s[%d:%d]" % (sLNK, sLNK + 1))
    out.append(".p2align 6")
    out.append(".type L_table,@object")
    lab("L_table")
    for r in TABLE:
        out.append("    .long %d, %d, %d, 0x%x" % r)
    out.append(".size L_table, %d" % (16 * len(TABLE)))
    out.append('.section .rodata,"a"')
    out.append(".p2align 6")
    out.append(".amdhsa_kernel %s_kernel" % NAME)
    out.append("  .amdhsa_next_free_vgpr 256")
    out.append("  .amdhsa_next_free_sgpr 96")
    out.append("  .amdhsa_accum_offset 256")
    out.append("  .amdhsa_group_segment_fixed_size 0")
    out.append("  .amdhsa_kernarg_size 56")
    out.append("  .amdhsa_user_sgpr_count 2")
    out.append("  .amdhsa_user_sgpr_kernarg_segment_ptr 1")
    out.append("  .amdhsa_system_sgpr_workgroup_id_x 1")
    out.append(".end_amdhsa_kernel")

assert XTRA % 4096 == 0, XTRA
gen()
dst = sys.argv[1] if len(sys.argv) > 1 else "cdna_kernels/%s.s" % NAME
open(dst, "w").write("\n".join(out) + "\n")
print("wrote", dst, len(out), "lines")
```

```python
import sys, math, struct

NAME = "standalone__ragged_sequences_packed_sequences__ragged"
CU = [0, 400, 516, 964, 1456, 1702, 1900, 2021, 2266]
T = 2266
ROWB = 4096
NBYTES = T * ROWB

XF = set(a[4:] for a in sys.argv if a.startswith("--x-")) | {"early"}
sys.argv = [a for a in sys.argv if not a.startswith("--x-")]
PROF = "--prof" in sys.argv
if PROF: sys.argv.remove("--prof")

STF = " sc0 sc1" if "sc01" in XF else " sc1" if "sc1" in XF else " nt" if "nt" in XF else " sc1 nt" if "sc1nt" in XF else ""
GRP = 1088
TILE = 8 * GRP
NS = 4
HALF_LDS = 2 * NS * TILE
XTRA = 2 * HALF_LDS
LDS_TOTAL = XTRA + 2 * TILE

def build_table():
    ent = []
    def seg(i):
        return CU[i], CU[i + 1] - CU[i]
    def ksplit(si, qt_starts):
        s, L = seg(si)
        nt = (L + 31) // 32
        nA = (nt + 1) // 2
        for q0 in qt_starts:
            a = (s, nA * 32, s + q0 * 32, s + L)
            b = (s + nA * 32, L - nA * 32, s + q0 * 32, s + L)
            ent.append((a, b, 1, q0))
    def qsplit(si):
        s, L = seg(si)
        ent.append(((s, L, s, s + L), (s, L, s + 128, s + L), 0, 0))
    qsplit(4)
    qsplit(7)
    ksplit(3, [0, 4, 8, 12])
    qsplit(5)
    ksplit(2, [0, 4, 8, 11])
    ksplit(0, [0, 4, 7, 10])
    s1, L1 = seg(1)
    s6, L6 = seg(6)
    ent.append(((s1, L1, s1, s1 + L1), (s6, L6, s6, s6 + L6), 0, 0))
    assert len(ent) == 16
    rows = []
    for j, (a, b, merge, q0) in enumerate(ent):
        nA = (a[1] + 31) // 32
        nB = (b[1] + 31) // 32
        assert nA >= 2 and nB >= 2
        niter = max(nA, nB)
        a = list(a); b = list(b)
        if merge:
            if j + 1 < 16 and ent[j + 1][2] and ent[j + 1][0][0] == a[0]:
                lim = ent[j + 1][0][2]
                a[3] = min(a[3], lim); b[3] = min(b[3], lim)
        for h in (a, b):
            rows.append((h[0], h[1], h[2], h[3] | (merge << 16) | (niter << 20)))
    return rows

TABLE = build_table()

vKoff, vVoff, vKoff2, vVoff2 = 1, 2, 3, 4
vKbE, vKbO, vVb01, vVb23 = 5, 6, 7, 8
vOut, vMC, vL = 9, 10, 11
vTS2 = 12
vH4, vTS = 14, 15
vT = 16
vP = 24
vX = 32
vS = 48
vO = 64
vQ = 128
vK = 160
vV = 192
vE = 224
vM = 240

sQ, sK, sV, sO = 8, 12, 16, 20
sC, sTHR = 40, 42
sT, sN, sNIT, sNM2, sMERGE, sQLIM, sQROW = 43, 44, 45, 46, 47, 48, 49
sKG, sVG, sKW, sVW = 50, 51, 52, 53
sNV, sHB, sSO01, sSO23, sQST = 54, 55, 56, 57, 58
sLNK, sMASKA, sRAREA = 76, 78, 80
sONE = 63
sA, sB, sVD = 64, 65, 66
sKW2, sVW2 = 67, 68
vVa01, vVa23, vKaE, vKaO = 9, 14, 224, 225

out = []
def e(s):
    out.append("    " + s)
def lab(s):
    out.append(s + ":")
def cm(s):
    out.append("    ; " + s)
def vr(b, n):
    return "v[%d:%d]" % (b, b + n - 1)

def stamp():
    if not PROF: return
    e("s_memtime s[90:91]")
    e("s_waitcnt lgkmcnt(0)")
    e("s_mov_b32 m0, s92")
    e("s_nop 0")
    e("v_writelane_b32 v239, s90, m0")
    e("s_add_u32 s92, s92, 1")
def rstamp(lane):
    if not PROF: return
    e("s_memrealtime s[90:91]")
    e("s_waitcnt lgkmcnt(0)")
    e("v_writelane_b32 v239, s90, %d" % lane)
def stamp_flush():
    if not PROF: return
    stamp()
    rstamp(63)
    e("s_load_dwordx2 s[84:85], s[0:1], 48")
    e("s_waitcnt lgkmcnt(0)")
    e("s_and_b32 s85, s85, 0xffff")
    e("s_mov_b32 s86, 0x1000000")
    e("s_mov_b32 s87, 0x00020000")
    e("s_lshl_b32 s93, s2, 3")
    e("s_add_u32 s93, s93, s3")
    e("s_lshl_b32 s93, s93, 8")
    e("v_lshlrev_b32 v238, 2, v0")
    e("buffer_store_dword v239, v238, s[84:87], s93 offen")

class DS:
    def __init__(self):
        self.q = []
    def reset(self, q=None):
        self.q = list(q) if q else []
    def issue(self, regs):
        self.q.append(set(regs))
    def need(self, regs):
        regs = set(regs)
        last = -1
        for i, s in enumerate(self.q):
            if s & regs:
                last = i
        if last < 0:
            return
        n = len(self.q) - 1 - last
        n = min(n, 15)
        e("s_waitcnt lgkmcnt(%d)" % n)
        self.q = self.q[len(self.q) - n:] if n else []
ds = DS()

def KM(slot, j):
    if slot == "dyn":
        return (lambda: e("s_add_u32 m0, s%d, s%d" % (sKW, sA))) if j == 0 else (lambda: e("s_add_u32 m0, s%d, s%d" % (sKW2, sA)))
    return lambda: e("s_add_u32 m0, s%d, %d" % (sKW, slot * TILE + j * 4 * GRP))
def KL(j):
    def f():
        e("buffer_load_dwordx4 v%d, s[%d:%d], s%d offen lds" % (vKoff2 if j else vKoff, sK, sK + 3, sKG))
        if j: e("s_add_u32 s%d, s%d, 0x20000" % (sKG, sKG))
    return f
def VM(slot, j):
    if slot == "dyn":
        return (lambda: e("s_add_u32 m0, s%d, s%d" % (sVW, sVD))) if j == 0 else (lambda: e("s_add_u32 m0, s%d, s%d" % (sVW2, sVD)))
    return lambda: e("s_add_u32 m0, s%d, %d" % (sVW, slot * TILE + j * 4 * GRP))
def VL(j):
    def f():
        e("buffer_load_dwordx4 v%d, s[%d:%d], s%d offen lds" % (vVoff2 if j else vVoff, sV, sV + 3, sVG))
        if j: e("s_add_u32 s%d, s%d, 0x20000" % (sVG, sVG))
    return f
def issue_K(slot):
    KM(slot, 0)(); e("s_nop 0"); KL(0)(); KM(slot, 1)(); e("s_nop 0"); KL(1)()
def issue_V(slot):
    VM(slot, 0)(); e("s_nop 0"); VL(0)(); VM(slot, 1)(); e("s_nop 0"); VL(1)()

def k_read(s, slot):
    d = vK + 4 * s
    a = vKbO if (s & 1) else vKbE
    if slot == "dyn":
        a = vKaO if (s & 1) else vKaE
        slot = 0
    e("ds_read_b128 %s, v%d offset:%d" % (vr(d, 4), a, slot * TILE + (s >> 1) * 64))
    ds.issue(range(d, d + 4))

def v_read(kh, b, jj, slot, a01, a23):
    d = vV + (kh * 4 + b) * 4 + jj * 2
    a = a23 if b >= 2 else a01
    off = slot * TILE + kh * 4 * GRP + jj * 512 + (b & 1) * 64
    e("ds_read_b64_tr_b16 %s, v%d offset:%d" % (vr(d, 2), a, off))
    ds.issue(range(d, d + 2))

def qk_mfma(s):
    ds.need(list(range(vK + 4 * s, vK + 4 * s + 4)) + list(range(vQ + 4 * s, vQ + 4 * s + 4)))
    c = vr(vS, 16) if s > 0 else "0"
    e("v_mfma_f32_32x32x16_bf16 %s, %s, %s, %s" % (vr(vS, 16), vr(vK + 4 * s, 4), vr(vQ + 4 * s, 4), c))

def pv_mfma(m):
    kh, b = m >> 2, m & 3
    f = vV + (kh * 4 + b) * 4
    if "vearly" in XF and m == 0:
        ds.need(range(vV, vV + 32))
    ds.need(range(f, f + 4))
    e("v_mfma_f32_32x32x16_bf16 %s, %s, %s, %s" % (vr(vO + 16 * b, 16), vr(f, 4), vr(vP + 4 * kh, 4), vr(vO + 16 * b, 16)))

def EXP(t, x): return lambda: e("v_exp_f32 v%d, v%d" % (vT + t, vX + x))
if "pkadd" in XF:
    def PADD(t): return lambda: e("v_pk_add_f32 %s, %s, %s" % (vr(vTS2, 2), vr(vTS2, 2), vr(vT + t, 2)))
    def PADD2(t0, t1): return lambda: e("v_pk_add_f32 %s, %s, %s" % (vr(vTS2, 2), vr(vT + t0, 2), vr(vT + t1, 2)))
else:
    def PADD(t): return lambda: (e("v_add_f32 v%d, v%d, v%d" % (vTS2, vTS2, vT + t)), e("v_add_f32 v%d, v%d, v%d" % (vTS2 + 1, vTS2 + 1, vT + t + 1)))
    def PADD2(t0, t1): return lambda: (e("v_add_f32 v%d, v%d, v%d" % (vTS2, vT + t0, vT + t1)), e("v_add_f32 v%d, v%d, v%d" % (vTS2 + 1, vT + t0 + 1, vT + t1 + 1)))
def CVT(p, t):
    def f():
        e("v_cvt_pk_bf16_f32 v%d, v%d, v%d" % (vP + p, vT + t, vT + t + 1))
        if "dot" in XF:
            if p == 0:
                e("v_dot2_f32_bf16 v%d, v%d, s%d, 0" % (vTS, vP + p, sONE))
            else:
                e("v_dot2c_f32_bf16 v%d, s%d, v%d" % (vTS, sONE, vP + p))
    return f
if "dot" in XF:
    def PADD(t): return lambda: None
    def PADD2(t0, t1): return lambda: None
if "pkfma" in XF:
    def PFMA(i): return lambda: e("v_pk_fma_f32 %s, %s, s[%d:%d], %s op_sel_hi:[1,0,0] neg_lo:[0,0,1] neg_hi:[0,0,1]" % (vr(vX + i, 2), vr(vS + i, 2), sC, sC + 1, vr(vMC, 2)))
else:
    def PFMA(i): return lambda: (e("v_fma_f32 v%d, v%d, s%d, -v%d" % (vX + i, vS + i, sC, vMC)), e("v_fma_f32 v%d, v%d, s%d, -v%d" % (vX + i + 1, vS + i + 1, sC, vMC)))

def gaps_A(vslot, kslot, a01=vVb01, a23=vVb23, dma=True):
    def VRD(kh, b): return lambda: (v_read(kh, b, 0, vslot, a01, a23), v_read(kh, b, 1, vslot, a01, a23))
    def VR1(kh, b, jj): return lambda: v_read(kh, b, jj, vslot, a01, a23)
    if "vearly" in XF:
        g = [
            [VRD(0, 0), VR1(0, 1, 0), EXP(0, 6), EXP(1, 7)],
            [VR1(0, 1, 1), VRD(0, 2), EXP(2, 8), PADD(0), CVT(3, 0)],
            [VRD(0, 3), VR1(1, 0, 0), EXP(3, 9), EXP(4, 10)],
            [VR1(1, 0, 1), VRD(1, 1), EXP(5, 11), PADD(2), CVT(4, 2)],
            [VRD(1, 2), EXP(6, 12), PADD(4), CVT(5, 4)],
            [VRD(1, 3), EXP(7, 13), EXP(0, 14)],
            [EXP(1, 15), PADD(6), CVT(6, 6)],
            [PADD(0), CVT(7, 0)],
        ]
    else:
        g = [
            [VRD(0, 0), EXP(0, 6), EXP(1, 7)],
            [VRD(0, 1), EXP(2, 8), PADD(0), CVT(3, 0)],
            [VRD(0, 2), EXP(3, 9), EXP(4, 10)],
            [VRD(0, 3), EXP(5, 11), PADD(2), CVT(4, 2)],
            [VRD(1, 0), EXP(6, 12), PADD(4), CVT(5, 4)],
            [VRD(1, 1), EXP(7, 13), EXP(0, 14)],
            [VRD(1, 2), EXP(1, 15), PADD(6), CVT(6, 6)],
            [VRD(1, 3), PADD(0), CVT(7, 0)],
        ]
    if dma:
        g[2] = [KM(kslot, 0)] + g[2] + [KL(0)]
        g[5] = [KM(kslot, 1)] + g[5] + [KL(1)]
    return g

def gaps_B(kslot, vslot, dma=True):
    def KRD(s): return lambda: k_read(s, kslot)
    g = [
        [KRD(0), KRD(1)],
        [KRD(2), KRD(3)],
        [KRD(4), KRD(5), PFMA(0), PFMA(2)],
        [KRD(6), KRD(7), PFMA(4), PFMA(6), EXP(2, 0), EXP(3, 1)],
        [PFMA(8), PFMA(10), EXP(4, 2), EXP(5, 3)],
        [PFMA(12), PFMA(14), CVT(0, 2), PADD2(2, 4)],
        [EXP(6, 4), EXP(7, 5), CVT(1, 4)],
        [PADD(6), CVT(2, 6)],
    ]
    if dma:
        g[0] = [VM(vslot, 0)] + g[0] + [VL(0)]
        g[1] = [VM(vslot, 1)] + g[1] + [VL(1)]
    return g

KPEND = [set(range(vK + 4 * s, vK + 4 * s + 4)) for s in range(8)]
stubs = []
def check(tag):
    if "dot" in XF:
        e("s_nop 2")
    else:
        e("v_add_f32 v%d, v%d, v%d" % (vTS, vTS2, vTS2 + 1))
    e("v_cmp_lt_f32 vcc, s%d, v%d" % (sTHR, vTS))
    e("s_cbranch_vccnz L_rs%s" % tag)
    lab("L_ret%s" % tag)
    e("v_add_f32 v%d, v%d, v%d" % (vL, vL, vTS))
    stubs.append(tag)

def header(vm=6):
    e("s_waitcnt vmcnt(%d) lgkmcnt(0)" % vm)
    e("s_barrier")
    stamp()

def gen():
    out.append("; @launch grid=(256,1,1) block=(512,1,1) lds=%d" % LDS_TOTAL)
    out.append('.amdgcn_target "amdgcn-amd-amdhsa--gfx950"')
    out.append(".text")
    out.append(".globl %s_kernel" % NAME)
    out.append(".p2align 8")
    out.append(".type %s_kernel,@function" % NAME)
    lab("%s_kernel" % NAME)
    e("s_cmp_ge_u32 s2, 256")
    e("s_cbranch_scc1 L_end")
    if PROF:
        e("s_mov_b32 s92, 0")
        e("v_mov_b32 v239, 0")
    rstamp(62)
    stamp()
    e("s_load_dwordx4 s[24:27], s[0:1], 0")
    e("s_load_dwordx2 s[28:29], s[0:1], 16")
    e("s_load_dwordx2 s[30:31], s[0:1], 32")
    e("v_lshrrev_b32 v1, 6, v0")
    e("s_and_b32 s4, s2, 7")
    e("v_readfirstlane_b32 s3, v1")
    e("s_lshl_b32 s4, s4, 1")
    e("s_bfe_u32 s5, s2, 0x10003")
    e("s_or_b32 s4, s4, s5")
    e("s_lshr_b32 s5, s2, 4")
    e("s_lshr_b32 s6, s3, 2")
    e("s_and_b32 s7, s3, 3")
    e("s_lshl_b32 s5, s5, 1")
    e("s_add_u32 s5, s5, s6")
    e("s_lshl_b32 s5, s5, 4")
    e("s_getpc_b64 s[32:33]")
    lab("L_pc")
    e("s_add_u32 s%d, s32, L_rare-L_pc" % sRAREA)
    e("s_addc_u32 s%d, s33, 0" % (sRAREA + 1))
    e("s_add_u32 s32, s32, L_table-L_pc")
    e("s_addc_u32 s33, s33, 0")
    e("s_load_dwordx4 s[36:39], s[32:33], s5")
    cm("lane constants")
    e("v_and_b32 v0, 63, v0")
    e("s_lshl_b32 s34, s4, 8")
    e("v_lshrrev_b32 v16, 4, v0")
    e("v_and_b32 v17, 15, v0")
    e("s_lshl_b32 s35, s7, 14")
    e("s_add_u32 s35, s35, s34")
    e("v_xor_b32 v18, v17, v16")
    e("v_lshlrev_b32 v18, 4, v18")
    e("v_lshl_add_u32 v22, v16, 12, v18")
    e("v_add_u32 v%d, s35, v22" % vKoff)
    e("v_add_u32 v%d, 0x10000, v%d" % (vKoff2, vKoff))
    e("s_lshl_b32 s35, s7, 12")
    e("s_add_u32 s35, s35, s34")
    e("v_lshlrev_b32 v18, 4, v17")
    e("v_lshl_add_u32 v18, v16, 14, v18")
    e("v_add_u32 v%d, s35, v18" % vVoff)
    e("v_add_u32 v%d, 0x10000, v%d" % (vVoff2, vVoff))
    e("s_mul_i32 s%d, s6, %d" % (sHB, HALF_LDS))
    e("s_mul_i32 s35, s7, %d" % GRP)
    e("s_add_u32 s%d, s%d, s35" % (sKW, sHB))
    e("s_add_u32 s%d, s%d, %d" % (sVW, sKW, NS * TILE))
    e("s_add_u32 s%d, s%d, %d" % (sKW2, sKW, 4 * GRP))
    e("s_add_u32 s%d, s%d, %d" % (sVW2, sVW, 4 * GRP))
    e("s_mov_b32 s%d, 0" % sA)
    e("s_mov_b32 s%d, %d" % (sB, 2 * TILE))
    e("s_mov_b32 s%d, %d" % (sVD, 3 * TILE))
    e("s_add_u32 s33, s7, 4")
    e("s_cmp_eq_u32 s7, 1")
    e("s_cselect_b32 s33, 3, s33")
    e("s_mul_i32 s59, s33, %d" % TILE)
    e("v_and_b32 v16, 31, v0")
    e("v_lshrrev_b32 v17, 5, v0")
    e("s_lshl_b32 s35, s7, 5")
    e("s_waitcnt lgkmcnt(0)")
    stamp()
    cm("SRDs; K/V descriptors end at the stream's last key")
    e("s_add_u32 s33, s36, s37")
    e("s_lshl_b32 s33, s33, 12")
    e("s_mov_b32 s%d, s26" % sK)
    e("s_and_b32 s%d, s27, 0xffff" % (sK + 1))
    e("s_mov_b32 s%d, s33" % (sK + 2))
    e("s_mov_b32 s%d, 0x00020000" % (sK + 3))
    e("s_lshl_b32 s%d, s36, 12" % sKG)
    issue_K(0)
    e("s_mov_b32 s%d, s24" % sQ)
    e("s_and_b32 s%d, s25, 0xffff" % (sQ + 1))
    e("s_mov_b32 s%d, %d" % (sQ + 2, NBYTES))
    e("s_mov_b32 s%d, 0x00020000" % (sQ + 3))
    e("s_add_u32 s%d, s38, s35" % sQROW)
    cm("Q tile -> staging slot, K-tile layout; k-split WGs share it between the halves (each loads 4 of 8 groups)")
    e("s_bfe_u32 s%d, s39, 0x10010" % sMERGE)
    e("s_cmp_eq_u32 s%d, 0" % sMERGE)
    e("s_cselect_b32 s60, s6, 0")
    e("s_cselect_b32 s61, 0, s6")
    e("s_mul_i32 s35, s60, %d" % TILE)
    e("s_add_u32 s35, s35, %d" % XTRA)
    e("s_mul_i32 s60, s60, %d" % HALF_LDS)
    e("s_add_u32 s60, s60, s59")
    e("s_cmp_eq_u32 s7, 0")
    e("s_cselect_b32 s%d, s35, s60" % sQST)
    e("s_lshl_b32 s35, s%d, 12" % sQROW)
    e("s_add_u32 s35, s35, s34")
    e("v_add_u32 v22, s35, v22")
    e("s_lshl_b32 s35, s61, 16")
    e("s_mul_i32 s61, s61, %d" % (4 * GRP))
    e("s_add_u32 s61, s61, s%d" % sQST)
    for g in range(8):
        if g == 4:
            e("s_cmp_lg_u32 s%d, 0" % sMERGE)
            e("s_cbranch_scc1 L_qdone")
        e("s_add_u32 m0, s61, %d" % (g * GRP))
        e("s_nop 0")
        e("buffer_load_dwordx4 v22, s[%d:%d], s35 offen lds" % (sQ, sQ + 3))
        if g < 7:
            e("s_add_u32 s35, s35, 0x4000")
    lab("L_qdone")
    issue_K(1)
    e("s_mov_b32 s%d, s28" % sV)
    e("s_and_b32 s%d, s29, 0xffff" % (sV + 1))
    e("s_mov_b32 s%d, s33" % (sV + 2))
    e("s_mov_b32 s%d, 0x00020000" % (sV + 3))
    e("s_lshl_b32 s%d, s36, 12" % sVG)
    issue_V(0)
    if "early" in XF:
        issue_K(2)
        issue_V(1)
    e("s_mov_b32 s%d, s30" % sO)
    e("s_and_b32 s%d, s31, 0xffff" % (sO + 1))
    e("s_and_b32 s%d, s39, 0xffff" % sQLIM)
    e("s_lshl_b32 s%d, s%d, 12" % (sO + 2, sQLIM))
    e("s_mov_b32 s%d, 0x00020000" % (sO + 3))
    cm("remaining setup while the first loads fly")
    e("v_lshlrev_b32 v%d, 2, v17" % vH4)
    e("v_lshrrev_b32 v20, 2, v16")
    e("v_and_b32 v21, 3, v16")
    e("v_mul_u32_u24 v20, %d, v20" % GRP)
    e("v_lshl_add_u32 v20, v21, 8, v20")
    e("v_xor_b32 v21, v21, v17")
    e("v_lshlrev_b32 v21, 4, v21")
    e("v_add_u32 v22, v20, v21")
    e("v_xor_b32 v21, 32, v21")
    e("v_add_u32 v23, v20, v21")
    e("v_add_u32 v%d, s%d, v22" % (vKbE, sHB))
    e("v_add_u32 v%d, s%d, v23" % (vKbO, sHB))
    e("v_add_u32 v22, s%d, v22" % sQST)
    e("v_add_u32 v23, s%d, v23" % sQST)
    e("v_bfe_u32 v20, v0, 2, 2")
    e("v_mul_u32_u24 v20, %d, v20" % GRP)
    e("v_lshl_add_u32 v20, v17, 8, v20")
    e("v_bfe_u32 v21, v0, 4, 1")
    e("v_lshl_add_u32 v20, v21, 5, v20")
    e("v_and_b32 v21, 3, v0")
    e("v_lshl_add_u32 v20, v21, 3, v20")
    e("s_lshl_b32 s%d, s6, 7" % sSO01)
    e("s_xor_b32 s%d, s%d, 128" % (sSO23, sSO01))
    e("s_add_u32 s35, s%d, %d" % (sHB, NS * TILE))
    e("v_add_u32 v20, s35, v20")
    e("v_add_u32 v%d, s%d, v20" % (vVb01, sSO01))
    e("v_add_u32 v%d, s%d, v20" % (vVb23, sSO23))
    c = (128 ** -0.5) * math.log2(math.e)
    e("s_mov_b32 s%d, 0x%08x" % (sC, struct.unpack("<I", struct.pack("<f", c))[0]))
    e("s_mov_b32 s%d, s%d" % (sC + 1, sC))
    e("s_mov_b32 s%d, 0x43800000" % sTHR)
    e("s_mov_b32 s%d, 0x3f803f80" % sONE)
    e("s_add_u32 s%d, s37, 31" % sN)
    e("s_lshr_b32 s%d, s%d, 5" % (sN, sN))
    e("s_lshr_b32 s%d, s39, 20" % sNIT)
    e("s_sub_u32 s%d, s%d, 2" % (sNM2, sN))
    e("s_sub_u32 s35, s%d, 1" % sN)
    e("s_lshl_b32 s35, s35, 5")
    e("s_sub_u32 s%d, s37, s35" % sNV)
    e("s_mov_b32 s%d, 0" % sT)
    cm("tail-tile mask block: (key < nv) ? 0 : -inf ; used as the C input of the last tile's first QK MFMA")
    e("s_sub_u32 s35, s%d, 1" % sNV)
    e("v_sub_u32 v20, s35, v%d" % vH4)
    for r in range(16):
        cr = 8 * (r >> 2) + (r & 3)
        e("v_subrev_u32 v%d, %d, v20" % (vM + r, cr))
    for r in range(16):
        e("v_ashrrev_i32 v%d, 31, v%d" % (vM + r, vM + r))
    for r in range(16):
        e("v_lshlrev_b32 v%d, 23, v%d" % (vM + r, vM + r))
    for i in range(0, 64, 2):
        e("v_pk_mov_b32 %s, 0, 0" % vr(vO + i, 2))
    e("v_mov_b32 v%d, 0" % vL)
    stamp()
    cm("P1: K0 and Q landed")
    e("s_waitcnt vmcnt(%d)" % (8 if "early" in XF else 4))
    e("s_barrier")
    stamp()
    if "early" not in XF:
        issue_K(2)
        issue_V(1)
    e("s_cmp_ge_u32 s%d, s%d" % (sQROW, sQLIM))
    e("s_cbranch_scc1 L_idle_p2")
    ds.reset()
    for s in range(8):
        d = vQ + 4 * s
        e("ds_read_b128 %s, v%d offset:%d" % (vr(d, 4), 23 if (s & 1) else 22, (s >> 1) * 64))
        ds.issue(range(d, d + 4))
        k_read(s, 0)
    for s in range(8):
        qk_mfma(s)
    cm("P2: K1 landed; Q staging slots are free after this barrier")
    e("s_waitcnt vmcnt(6)")
    e("s_barrier")
    stamp()
    issue_K(3)
    issue_V(2)
    cm("row max of tile 0")
    t0, t1 = vT, vT + 1
    e("v_max3_f32 v%d, v%d, v%d, v%d" % (t0, vS, vS + 1, vS + 2))
    for i in range(3, 15, 2):
        e("v_max3_f32 v%d, v%d, v%d, v%d" % (t0, t0, vS + i, vS + i + 1))
    e("v_max_f32 v%d, v%d, v%d" % (t0, t0, vS + 15))
    e("v_mov_b32 v%d, v%d" % (t1, t0))
    e("s_nop 1")
    e("v_permlane32_swap_b32 v%d, v%d" % (t0, t1))
    e("v_max_f32 v%d, v%d, v%d" % (t0, t0, t1))
    e("v_mul_f32 v%d, s%d, v%d" % (vMC, sC, t0))
    for g in gaps_B(1, 0, dma=False):
        for f in g:
            f()
        e("s_nop 0")
    cm("main loop")
    def advance():
        e("s_mov_b32 s%d, s%d" % (sB, sVD))
        e("s_mov_b32 s%d, s%d" % (sVD, sA))
        e("s_add_u32 s%d, s%d, %d" % (sA, sA, TILE))
        e("s_cmp_eq_u32 s%d, %d" % (sA, NS * TILE))
        e("s_cselect_b32 s%d, 0, s%d" % (sA, sA))
    lab("L_loop")
    e("v_add_u32 v%d, s%d, v%d" % (vVa01, sA, vVb01))
    e("v_add_u32 v%d, s%d, v%d" % (vVa23, sA, vVb23))
    header()
    ds.reset()
    e("s_cmp_lg_u32 s%d, s%d" % (sT, sNM2))
    e("s_cbranch_scc1 L_nm")
    e("v_mfma_f32_32x32x16_bf16 %s, %s, %s, %s" % (vr(vS, 16), vr(vK, 4), vr(vQ, 4), vr(vM, 16)))
    e("s_branch L_m")
    lab("L_nm")
    qk_mfma(0)
    lab("L_m")
    ga = gaps_A(0, "dyn", vVa01, vVa23)
    ga[7] = ga[7] + [lambda: e("v_add_u32 v%d, s%d, v%d" % (vKaE, sB, vKbE)), lambda: e("v_add_u32 v%d, s%d, v%d" % (vKaO, sB, vKbO))]
    for s in range(8):
        if s > 0:
            qk_mfma(s)
        for f in ga[s]:
            f()
    check("l")
    gb = gaps_B("dyn", "dyn")
    gb[7] = gb[7] + [advance]
    for m in range(8):
        pv_mfma(m)
        for f in gb[m]:
            f()
    e("s_add_u32 s%d, s%d, 1" % (sT, sT))
    e("s_cmp_le_u32 s%d, s%d" % (sT, sNM2))
    e("s_cbranch_scc1 L_loop")
    cm("tail iteration")
    e("v_add_u32 v%d, s%d, v%d" % (vVa01, sA, vVb01))
    e("v_add_u32 v%d, s%d, v%d" % (vVa23, sA, vVb23))
    header()
    ds.reset()
    for g in gaps_A(0, 0, vVa01, vVa23, dma=False):
        for f in g:
            f()
        e("s_nop 0")
    check("t")
    e("s_nop 1")
    for m in range(8):
        pv_mfma(m)
    e("s_add_u32 s%d, s%d, 1" % (sT, sT))
    lab("L_service")
    e("s_cmp_ge_u32 s%d, s%d" % (sT, sNIT))
    e("s_cbranch_scc1 L_epi")
    e("s_barrier")
    e("s_add_u32 s%d, s%d, 1" % (sT, sT))
    e("s_branch L_service")
    cm("epilogue")
    lab("L_epi")
    stamp()
    e("v_mov_b32 v%d, v%d" % (t0, vL))
    e("s_waitcnt vmcnt(0)")
    e("s_nop 0")
    e("v_permlane32_swap_b32 v%d, v%d" % (vL, t0))
    e("v_add_f32 v%d, v%d, v%d" % (vL, vL, t0))
    fa, fb = vT + 4, vT + 6
    mo, lo, mn = vT + 2, vT + 3, vT
    e("s_cmp_eq_u32 s%d, 0" % sMERGE)
    e("s_cbranch_scc1 L_nomerge")
    cm("merge with partner wave (wave ^ 4): exchange through this wave's own DMA pieces of the K ring")
    e("v_lshlrev_b32 v%d, 4, v0" % t0)
    e("v_add_u32 v%d, s%d, v%d" % (t1, sKW, t0))
    e("s_add_u32 s33, s%d, %d" % (sKW, HALF_LDS))
    e("s_sub_u32 s35, s%d, %d" % (sKW, HALF_LDS))
    e("s_cmp_eq_u32 s6, 0")
    e("s_cselect_b32 s35, s33, s35")
    e("v_add_u32 v%d, s35, v%d" % (vE, t0))
    e("s_lshl_b32 s35, s3, 9")
    e("s_add_u32 s35, s35, %d" % XTRA)
    e("v_lshlrev_b32 v%d, 3, v0" % t0)
    e("v_add_u32 v%d, s35, v%d" % (vE + 1, t0))
    e("v_xor_b32 v%d, 0x800, v%d" % (vE + 2, vE + 1))
    e("s_nop 3")
    for i in range(8):
        e("ds_write_b128 v%d, %s offset:%d" % (t1, vr(vO + 32 + 4 * i, 4), (i >> 1) * TILE + (i & 1) * 4 * GRP))
    e("ds_write_b64 v%d, %s" % (vE + 1, vr(vMC, 2)))
    e("s_waitcnt lgkmcnt(0)")
    e("s_barrier")
    e("ds_read_b64 %s, v%d" % (vr(mo, 2), vE + 2))
    for i in range(8):
        e("ds_read_b128 %s, v%d offset:%d" % (vr(vK + 4 * i, 4), vE, (i >> 1) * TILE + (i & 1) * 4 * GRP))
    e("s_waitcnt lgkmcnt(8)")
    e("v_max_f32 v%d, v%d, v%d" % (mn, vMC, mo))
    e("v_sub_f32 v%d, v%d, v%d" % (fa, vMC, mn))
    e("v_sub_f32 v%d, v%d, v%d" % (fb, mo, mn))
    e("v_exp_f32 v%d, v%d" % (fa, fa))
    e("v_exp_f32 v%d, v%d" % (fb, fb))
    e("s_nop 0")
    e("v_mul_f32 v%d, v%d, v%d" % (vL, vL, fa))
    e("v_fmac_f32 v%d, v%d, v%d" % (vL, lo, fb))
    e("v_rcp_f32 v%d, v%d" % (vL, vL))
    e("s_nop 0")
    e("v_mul_f32 v%d, v%d, v%d" % (fa, fa, vL))
    e("v_mul_f32 v%d, v%d, v%d" % (fb, fb, vL))
    for i in range(0, 32, 2):
        e("v_pk_mul_f32 %s, %s, %s op_sel_hi:[1,0]" % (vr(vO + i, 2), vr(vO + i, 2), vr(fa, 2)))
    for i in range(0, 32, 2):
        if i % 4 == 0:
            e("s_waitcnt lgkmcnt(%d)" % (7 - i // 4))
        e("v_pk_fma_f32 %s, %s, %s, %s op_sel_hi:[1,0,1]" % (vr(vO + i, 2), vr(vK + i, 2), vr(fb, 2), vr(vO + i, 2)))
    e("s_branch L_store")
    lab("L_nomerge")
    e("v_rcp_f32 v%d, v%d" % (fa, vL))
    e("s_nop 7")
    for i in range(0, 64, 2):
        e("v_pk_mul_f32 %s, %s, %s op_sel_hi:[1,0]" % (vr(vO + i, 2), vr(vO + i, 2), vr(fa, 2)))
    lab("L_store")
    stamp()
    cm("stage the bf16 tile through this wave's own LDS pieces (rows of 272 B, 4 rows per piece), then store whole rows")
    e("s_cmp_lg_u32 s%d, 0" % sMERGE)
    e("s_cselect_b32 s60, s%d, s%d" % (sVW, sKW))
    e("s_cselect_b32 s61, 0, s%d" % sSO01)
    e("v_and_b32 v%d, 31, v0" % t0)
    e("v_lshrrev_b32 v%d, 3, v%d" % (t1, t0))
    e("v_mul_u32_u24 v%d, %d, v%d" % (t1, TILE, t1))
    e("v_bfe_u32 v%d, v%d, 2, 1" % (vT + 2, t0))
    e("v_mul_u32_u24 v%d, %d, v%d" % (vT + 2, 4 * GRP, vT + 2))
    e("v_and_b32 v%d, 3, v%d" % (vT + 3, t0))
    e("v_mul_u32_u24 v%d, 272, v%d" % (vT + 3, vT + 3))
    e("v_add3_u32 v%d, v%d, v%d, v%d" % (t1, t1, vT + 2, vT + 3))
    e("v_lshrrev_b32 v%d, 5, v0" % t0)
    e("v_lshl_add_u32 v%d, v%d, 4, v%d" % (t1, t0, t1))
    e("v_add_u32 v%d, s60, v%d" % (t1, t1))
    e("v_add_u32 v%d, s61, v%d" % (vE, t1))
    e("v_add_u32 v%d, s%d, v%d" % (vE + 1, sSO23, t1))
    def stage_blocks(b0, a):
        for b in (b0, b0 + 1):
            for p in range(2):
                q = vV + ((b & 3) * 2 + p) * 4
                src = vO + 16 * b + 8 * p
                for k in range(4):
                    e("v_cvt_pk_bf16_f32 v%d, v%d, v%d" % (q + k, src + 2 * k, src + 2 * k + 1))
                e("s_nop 1")
                e("v_permlane32_swap_b32 v%d, v%d" % (q, q + 2))
                e("v_permlane32_swap_b32 v%d, v%d" % (q + 1, q + 3))
                e("ds_write_b128 v%d, %s offset:%d" % (a, vr(q, 4), (b & 1) * 64 + p * 32))
    stage_blocks(0, vE)
    e("s_lshl_b32 s35, s%d, 12" % sQROW)
    e("s_add_u32 s35, s35, s34")
    e("s_cmp_lg_u32 s%d, 0" % sMERGE)
    e("s_cbranch_scc1 L_st_merge")
    stage_blocks(2, vE + 1)
    e("v_lshrrev_b32 v%d, 4, v0" % t0)
    e("v_and_b32 v%d, 15, v0" % t1)
    e("v_lshlrev_b32 v%d, 4, v%d" % (t1, t1))
    e("v_mul_u32_u24 v%d, 272, v%d" % (vT + 2, t0))
    e("v_add3_u32 v%d, v%d, v%d, s60" % (vT + 2, vT + 2, t1))
    e("v_lshl_add_u32 v%d, v%d, 12, v%d" % (vT + 3, t0, t1))
    e("s_waitcnt lgkmcnt(0)")
    for k in range(8):
        e("ds_read_b128 %s, v%d offset:%d" % (vr(vK + 4 * k, 4), vT + 2, (k >> 1) * TILE + (k & 1) * 4 * GRP))
    for k in range(8):
        e("s_waitcnt lgkmcnt(%d)" % (7 - k))
        e("buffer_store_dwordx4 %s, v%d, s[%d:%d], s35 offen%s" % (vr(vK + 4 * k, 4), vT + 3, sO, sO + 3, STF))
        if k < 7:
            e("s_add_u32 s35, s35, 0x4000")
    e("s_branch L_fin")
    lab("L_st_merge")
    e("v_lshrrev_b32 v%d, 3, v0" % t0)
    e("v_and_b32 v%d, 7, v0" % t1)
    e("v_lshlrev_b32 v%d, 4, v%d" % (t1, t1))
    e("v_and_b32 v%d, 3, v%d" % (vT + 2, t0))
    e("v_mul_u32_u24 v%d, 272, v%d" % (vT + 2, vT + 2))
    e("v_lshrrev_b32 v%d, 5, v0" % (vT + 3))
    e("v_mul_u32_u24 v%d, %d, v%d" % (vT + 3, 4 * GRP, vT + 3))
    e("v_add3_u32 v%d, v%d, v%d, v%d" % (vT + 2, vT + 2, vT + 3, t1))
    e("v_add_u32 v%d, s60, v%d" % (vT + 2, vT + 2))
    e("v_lshl_add_u32 v%d, v%d, 12, v%d" % (vT + 3, t0, t1))
    e("s_add_u32 s35, s35, s%d" % sSO01)
    e("s_waitcnt lgkmcnt(0)")
    for k in range(4):
        e("ds_read_b128 %s, v%d offset:%d" % (vr(vK + 4 * k, 4), vT + 2, k * TILE))
    for k in range(4):
        e("s_waitcnt lgkmcnt(%d)" % (3 - k))
        e("buffer_store_dwordx4 %s, v%d, s[%d:%d], s35 offen%s" % (vr(vK + 4 * k, 4), vT + 3, sO, sO + 3, STF))
        if k < 3:
            e("s_add_u32 s35, s35, 0x8000")
    lab("L_fin")
    if PROF:
        e("s_waitcnt vmcnt(0)")
    stamp_flush()
    e("s_endpgm")
    cm("waves without q rows: only DMA duty and barriers")
    lab("L_idle_p2")
    e("s_waitcnt vmcnt(6)")
    e("s_barrier")
    issue_K(3)
    issue_V(2)
    lab("L_idle_loop")
    e("s_waitcnt vmcnt(6)")
    e("s_barrier")
    issue_K("dyn")
    issue_V("dyn")
    advance()
    e("s_add_u32 s%d, s%d, 1" % (sT, sT))
    e("s_cmp_lt_u32 s%d, s%d" % (sT, sNIT))
    e("s_cbranch_scc1 L_idle_loop")
    lab("L_idle_epi")
    e("s_waitcnt vmcnt(0)")
    e("s_cmp_eq_u32 s%d, 0" % sMERGE)
    e("s_cbranch_scc1 L_end")
    e("s_barrier")
    lab("L_end")
    e("s_endpgm")
    for tag in stubs:
        lab("L_rs%s" % tag)
        e("s_swappc_b64 s[%d:%d], s[%d:%d]" % (sLNK, sLNK + 1, sRAREA, sRAREA + 1))
        e("s_branch L_ret%s" % tag)
    cm("rare path: running max grew too much; rescale and recompute this tile's P")
    lab("L_rare")
    e("v_max3_f32 v%d, v%d, v%d, v%d" % (t0, vX, vX + 1, vX + 2))
    for i in range(3, 15, 2):
        e("v_max3_f32 v%d, v%d, v%d, v%d" % (t0, t0, vX + i, vX + i + 1))
    e("v_max_f32 v%d, v%d, v%d" % (t0, t0, vX + 15))
    e("v_mov_b32 v%d, v%d" % (t1, t0))
    e("s_nop 1")
    e("v_permlane32_swap_b32 v%d, v%d" % (t0, t1))
    e("v_max3_f32 v%d, v%d, v%d, 0" % (t0, t0, t1))
    e("v_add_f32 v%d, v%d, v%d" % (vMC, vMC, t0))
    e("v_exp_f32 v%d, -v%d" % (t1, t0))
    e("s_nop 0")
    e("v_mul_f32 v%d, v%d, v%d" % (vL, vL, t1))
    for i in range(64):
        e("v_mul_f32 v%d, v%d, v%d" % (vO + i, vO + i, t1))
    for i in range(16):
        e("v_sub_f32 v%d, v%d, v%d" % (vX + i, vX + i, t0))
    e("v_mov_b32 v%d, 0" % vTS)
    for p in range(8):
        a, b = vT + 2 + (p & 1) * 2, vT + 3 + (p & 1) * 2
        e("v_exp_f32 v%d, v%d" % (a, vX + 2 * p))
        e("v_exp_f32 v%d, v%d" % (b, vX + 2 * p + 1))
        e("s_nop 0")
        e("v_add_f32 v%d, v%d, v%d" % (vTS, vTS, a))
        e("v_add_f32 v%d, v%d, v%d" % (vTS, vTS, b))
        e("v_cvt_pk_bf16_f32 v%d, v%d, v%d" % (vP + p, a, b))
    e("s_nop 1")
    e("s_setpc_b64 s[%d:%d]" % (sLNK, sLNK + 1))
    out.append(".p2align 6")
    out.append(".type L_table,@object")
    lab("L_table")
    for r in TABLE:
        out.append("    .long %d, %d, %d, 0x%x" % r)
    out.append(".size L_table, %d" % (16 * len(TABLE)))
    out.append('.section .rodata,"a"')
    out.append(".p2align 6")
    out.append(".amdhsa_kernel %s_kernel" % NAME)
    out.append("  .amdhsa_next_free_vgpr 256")
    out.append("  .amdhsa_next_free_sgpr 96")
    out.append("  .amdhsa_accum_offset 256")
    out.append("  .amdhsa_group_segment_fixed_size 0")
    out.append("  .amdhsa_kernarg_size 56")
    out.append("  .amdhsa_user_sgpr_count 2")
    out.append("  .amdhsa_user_sgpr_kernarg_segment_ptr 1")
    out.append("  .amdhsa_system_sgpr_workgroup_id_x 1")
    out.append(".end_amdhsa_kernel")

assert XTRA % 4096 == 0, XTRA
gen()
dst = sys.argv[1] if len(sys.argv) > 1 else "cdna_kernels/%s.s" % NAME
open(dst, "w").write("\n".join(out) + "\n")
print("wrote", dst, len(out), "lines")
```

```python
import sys, math, struct

NAME = "standalone__ragged_sequences_packed_sequences__ragged"
CU = [0, 400, 516, 964, 1456, 1702, 1900, 2021, 2266]
T = 2266
ROWB = 4096
NBYTES = T * ROWB

XF = set(a[4:] for a in sys.argv if a.startswith("--x-")) | {"early", "qnt", "nt"}
sys.argv = [a for a in sys.argv if not a.startswith("--x-")]
PROF = "--prof" in sys.argv
if PROF: sys.argv.remove("--prof")

STF = " sc0 sc1" if "sc01" in XF else " sc1" if "sc1" in XF else " nt" if "nt" in XF else " sc1 nt" if "sc1nt" in XF else ""
KVF = [" nt" if ("kvnt" in XF or "kvpro" in XF) else ""]
GRP = 1088
TILE = 8 * GRP
NS = 4
HALF_LDS = 2 * NS * TILE
XTRA = 2 * HALF_LDS
LDS_TOTAL = XTRA + 2 * TILE

def build_table():
    ent = []
    def seg(i):
        return CU[i], CU[i + 1] - CU[i]
    def ksplit(si, qt_starts):
        s, L = seg(si)
        nt = (L + 31) // 32
        nA = (nt + 1) // 2
        for q0 in qt_starts:
            a = (s, nA * 32, s + q0 * 32, s + L)
            b = (s + nA * 32, L - nA * 32, s + q0 * 32, s + L)
            ent.append((a, b, 1, q0))
    def qsplit(si):
        s, L = seg(si)
        ent.append(((s, L, s, s + L), (s, L, s + 128, s + L), 0, 0))
    qsplit(4)
    qsplit(7)
    ksplit(3, [0, 4, 8, 12])
    qsplit(5)
    ksplit(2, [0, 4, 8, 11])
    ksplit(0, [0, 4, 7, 10])
    s1, L1 = seg(1)
    s6, L6 = seg(6)
    ent.append(((s1, L1, s1, s1 + L1), (s6, L6, s6, s6 + L6), 0, 0))
    assert len(ent) == 16
    rows = []
    for j, (a, b, merge, q0) in enumerate(ent):
        nA = (a[1] + 31) // 32
        nB = (b[1] + 31) // 32
        assert nA >= 2 and nB >= 2
        niter = max(nA, nB)
        a = list(a); b = list(b)
        if merge:
            if j + 1 < 16 and ent[j + 1][2] and ent[j + 1][0][0] == a[0]:
                lim = ent[j + 1][0][2]
                a[3] = min(a[3], lim); b[3] = min(b[3], lim)
        for h in (a, b):
            rows.append((h[0], h[1], h[2], h[3] | (merge << 16) | (niter << 20)))
    return rows

TABLE = build_table()

vKoff, vVoff, vKoff2, vVoff2 = 1, 2, 3, 4
vKbE, vKbO, vVb01, vVb23 = 5, 6, 7, 8
vOut, vMC, vL = 9, 10, 11
vTS2 = 12
vH4, vTS = 14, 15
vT = 16
vP = 24
vX = 32
vS = 48
vO = 64
vQ = 128
vK = 160
vV = 192
vE = 224
vM = 240

sQ, sK, sV, sO = 8, 12, 16, 20
sC, sTHR = 40, 42
sT, sN, sNIT, sNM2, sMERGE, sQLIM, sQROW = 43, 44, 45, 46, 47, 48, 49
sKG, sVG, sKW, sVW = 50, 51, 52, 53
sNV, sHB, sSO01, sSO23, sQST = 54, 55, 56, 57, 58
sLNK, sMASKA, sRAREA = 76, 78, 80
sONE = 63
sA, sB, sVD = 64, 65, 66
sKW2, sVW2 = 67, 68
vVa01, vVa23, vKaE, vKaO = 9, 14, 224, 225

out = []
def e(s):
    out.append("    " + s)
def lab(s):
    out.append(s + ":")
def cm(s):
    out.append("    ; " + s)
def vr(b, n):
    return "v[%d:%d]" % (b, b + n - 1)

def stamp():
    if not PROF: return
    e("s_memtime s[90:91]")
    e("s_waitcnt lgkmcnt(0)")
    e("s_mov_b32 m0, s92")
    e("s_nop 0")
    e("v_writelane_b32 v239, s90, m0")
    e("s_add_u32 s92, s92, 1")
def rstamp(lane):
    if not PROF: return
    e("s_memrealtime s[90:91]")
    e("s_waitcnt lgkmcnt(0)")
    e("v_writelane_b32 v239, s90, %d" % lane)
def stamp_flush():
    if not PROF: return
    stamp()
    rstamp(63)
    e("s_load_dwordx2 s[84:85], s[0:1], 48")
    e("s_waitcnt lgkmcnt(0)")
    e("s_and_b32 s85, s85, 0xffff")
    e("s_mov_b32 s86, 0x1000000")
    e("s_mov_b32 s87, 0x00020000")
    e("s_lshl_b32 s93, s2, 3")
    e("s_add_u32 s93, s93, s3")
    e("s_lshl_b32 s93, s93, 8")
    e("v_lshlrev_b32 v238, 2, v0")
    e("buffer_store_dword v239, v238, s[84:87], s93 offen")

class DS:
    def __init__(self):
        self.q = []
    def reset(self, q=None):
        self.q = list(q) if q else []
    def issue(self, regs):
        self.q.append(set(regs))
    def need(self, regs):
        regs = set(regs)
        last = -1
        for i, s in enumerate(self.q):
            if s & regs:
                last = i
        if last < 0:
            return
        n = len(self.q) - 1 - last
        n = min(n, 15)
        e("s_waitcnt lgkmcnt(%d)" % n)
        self.q = self.q[len(self.q) - n:] if n else []
ds = DS()

def KM(slot, j):
    if slot == "dyn":
        return (lambda: e("s_add_u32 m0, s%d, s%d" % (sKW, sA))) if j == 0 else (lambda: e("s_add_u32 m0, s%d, s%d" % (sKW2, sA)))
    return lambda: e("s_add_u32 m0, s%d, %d" % (sKW, slot * TILE + j * 4 * GRP))
def KL(j):
    def f():
        e("buffer_load_dwordx4 v%d, s[%d:%d], s%d offen%s lds" % (vKoff2 if j else vKoff, sK, sK + 3, sKG, KVF[0]))
        if j: e("s_add_u32 s%d, s%d, 0x20000" % (sKG, sKG))
    return f
def VM(slot, j):
    if slot == "dyn":
        return (lambda: e("s_add_u32 m0, s%d, s%d" % (sVW, sVD))) if j == 0 else (lambda: e("s_add_u32 m0, s%d, s%d" % (sVW2, sVD)))
    return lambda: e("s_add_u32 m0, s%d, %d" % (sVW, slot * TILE + j * 4 * GRP))
def VL(j):
    def f():
        e("buffer_load_dwordx4 v%d, s[%d:%d], s%d offen%s lds" % (vVoff2 if j else vVoff, sV, sV + 3, sVG, KVF[0]))
        if j: e("s_add_u32 s%d, s%d, 0x20000" % (sVG, sVG))
    return f
def issue_K(slot):
    KM(slot, 0)(); e("s_nop 0"); KL(0)(); KM(slot, 1)(); e("s_nop 0"); KL(1)()
def issue_V(slot):
    VM(slot, 0)(); e("s_nop 0"); VL(0)(); VM(slot, 1)(); e("s_nop 0"); VL(1)()

def k_read(s, slot):
    d = vK + 4 * s
    a = vKbO if (s & 1) else vKbE
    if slot == "dyn":
        a = vKaO if (s & 1) else vKaE
        slot = 0
    e("ds_read_b128 %s, v%d offset:%d" % (vr(d, 4), a, slot * TILE + (s >> 1) * 64))
    ds.issue(range(d, d + 4))

def v_read(kh, b, jj, slot, a01, a23):
    d = vV + (kh * 4 + b) * 4 + jj * 2
    a = a23 if b >= 2 else a01
    off = slot * TILE + kh * 4 * GRP + jj * 512 + (b & 1) * 64
    e("ds_read_b64_tr_b16 %s, v%d offset:%d" % (vr(d, 2), a, off))
    ds.issue(range(d, d + 2))

def qk_mfma(s):
    ds.need(list(range(vK + 4 * s, vK + 4 * s + 4)) + list(range(vQ + 4 * s, vQ + 4 * s + 4)))
    c = vr(vS, 16) if s > 0 else "0"
    e("v_mfma_f32_32x32x16_bf16 %s, %s, %s, %s" % (vr(vS, 16), vr(vK + 4 * s, 4), vr(vQ + 4 * s, 4), c))

def pv_mfma(m):
    kh, b = m >> 2, m & 3
    f = vV + (kh * 4 + b) * 4
    if "vearly" in XF and m == 0:
        ds.need(range(vV, vV + 32))
    ds.need(range(f, f + 4))
    e("v_mfma_f32_32x32x16_bf16 %s, %s, %s, %s" % (vr(vO + 16 * b, 16), vr(f, 4), vr(vP + 4 * kh, 4), vr(vO + 16 * b, 16)))

def EXP(t, x): return lambda: e("v_exp_f32 v%d, v%d" % (vT + t, vX + x))
if "pkadd" in XF:
    def PADD(t): return lambda: e("v_pk_add_f32 %s, %s, %s" % (vr(vTS2, 2), vr(vTS2, 2), vr(vT + t, 2)))
    def PADD2(t0, t1): return lambda: e("v_pk_add_f32 %s, %s, %s" % (vr(vTS2, 2), vr(vT + t0, 2), vr(vT + t1, 2)))
else:
    def PADD(t): return lambda: (e("v_add_f32 v%d, v%d, v%d" % (vTS2, vTS2, vT + t)), e("v_add_f32 v%d, v%d, v%d" % (vTS2 + 1, vTS2 + 1, vT + t + 1)))
    def PADD2(t0, t1): return lambda: (e("v_add_f32 v%d, v%d, v%d" % (vTS2, vT + t0, vT + t1)), e("v_add_f32 v%d, v%d, v%d" % (vTS2 + 1, vT + t0 + 1, vT + t1 + 1)))
def CVT(p, t):
    def f():
        e("v_cvt_pk_bf16_f32 v%d, v%d, v%d" % (vP + p, vT + t, vT + t + 1))
        if "dot" in XF:
            if p == 0:
                e("v_dot2_f32_bf16 v%d, v%d, s%d, 0" % (vTS, vP + p, sONE))
            else:
                e("v_dot2c_f32_bf16 v%d, s%d, v%d" % (vTS, sONE, vP + p))
    return f
if "dot" in XF:
    def PADD(t): return lambda: None
    def PADD2(t0, t1): return lambda: None
if "pkfma" in XF:
    def PFMA(i): return lambda: e("v_pk_fma_f32 %s, %s, s[%d:%d], %s op_sel_hi:[1,0,0] neg_lo:[0,0,1] neg_hi:[0,0,1]" % (vr(vX + i, 2), vr(vS + i, 2), sC, sC + 1, vr(vMC, 2)))
else:
    def PFMA(i): return lambda: (e("v_fma_f32 v%d, v%d, s%d, -v%d" % (vX + i, vS + i, sC, vMC)), e("v_fma_f32 v%d, v%d, s%d, -v%d" % (vX + i + 1, vS + i + 1, sC, vMC)))

def gaps_A(vslot, kslot, a01=vVb01, a23=vVb23, dma=True):
    def VRD(kh, b): return lambda: (v_read(kh, b, 0, vslot, a01, a23), v_read(kh, b, 1, vslot, a01, a23))
    def VR1(kh, b, jj): return lambda: v_read(kh, b, jj, vslot, a01, a23)
    if "vearly" in XF:
        g = [
            [VRD(0, 0), VR1(0, 1, 0), EXP(0, 6), EXP(1, 7)],
            [VR1(0, 1, 1), VRD(0, 2), EXP(2, 8), PADD(0), CVT(3, 0)],
            [VRD(0, 3), VR1(1, 0, 0), EXP(3, 9), EXP(4, 10)],
            [VR1(1, 0, 1), VRD(1, 1), EXP(5, 11), PADD(2), CVT(4, 2)],
            [VRD(1, 2), EXP(6, 12), PADD(4), CVT(5, 4)],
            [VRD(1, 3), EXP(7, 13), EXP(0, 14)],
            [EXP(1, 15), PADD(6), CVT(6, 6)],
            [PADD(0), CVT(7, 0)],
        ]
    else:
        g = [
            [VRD(0, 0), EXP(0, 6), EXP(1, 7)],
            [VRD(0, 1), EXP(2, 8), PADD(0), CVT(3, 0)],
            [VRD(0, 2), EXP(3, 9), EXP(4, 10)],
            [VRD(0, 3), EXP(5, 11), PADD(2), CVT(4, 2)],
            [VRD(1, 0), EXP(6, 12), PADD(4), CVT(5, 4)],
            [VRD(1, 1), EXP(7, 13), EXP(0, 14)],
            [VRD(1, 2), EXP(1, 15), PADD(6), CVT(6, 6)],
            [VRD(1, 3), PADD(0), CVT(7, 0)],
        ]
    if dma:
        g[2] = [KM(kslot, 0)] + g[2] + [KL(0)]
        g[5] = [KM(kslot, 1)] + g[5] + [KL(1)]
    return g

def gaps_B(kslot, vslot, dma=True):
    def KRD(s): return lambda: k_read(s, kslot)
    g = [
        [KRD(0), KRD(1)],
        [KRD(2), KRD(3)],
        [KRD(4), KRD(5), PFMA(0), PFMA(2)],
        [KRD(6), KRD(7), PFMA(4), PFMA(6), EXP(2, 0), EXP(3, 1)],
        [PFMA(8), PFMA(10), EXP(4, 2), EXP(5, 3)],
        [PFMA(12), PFMA(14), CVT(0, 2), PADD2(2, 4)],
        [EXP(6, 4), EXP(7, 5), CVT(1, 4)],
        [PADD(6), CVT(2, 6)],
    ]
    if dma:
        g[0] = [VM(vslot, 0)] + g[0] + [VL(0)]
        g[1] = [VM(vslot, 1)] + g[1] + [VL(1)]
    return g

KPEND = [set(range(vK + 4 * s, vK + 4 * s + 4)) for s in range(8)]
stubs = []
def check(tag):
    if "dot" in XF:
        e("s_nop 2")
    else:
        e("v_add_f32 v%d, v%d, v%d" % (vTS, vTS2, vTS2 + 1))
    e("v_cmp_lt_f32 vcc, s%d, v%d" % (sTHR, vTS))
    e("s_cbranch_vccnz L_rs%s" % tag)
    lab("L_ret%s" % tag)
    e("v_add_f32 v%d, v%d, v%d" % (vL, vL, vTS))
    stubs.append(tag)

def header(vm=6):
    e("s_waitcnt vmcnt(%d) lgkmcnt(0)" % vm)
    e("s_barrier")
    stamp()

def gen():
    out.append("; @launch grid=(256,1,1) block=(512,1,1) lds=%d" % LDS_TOTAL)
    out.append('.amdgcn_target "amdgcn-amd-amdhsa--gfx950"')
    out.append(".text")
    out.append(".globl %s_kernel" % NAME)
    out.append(".p2align 8")
    out.append(".type %s_kernel,@function" % NAME)
    lab("%s_kernel" % NAME)
    e("s_cmp_ge_u32 s2, 256")
    e("s_cbranch_scc1 L_end")
    if PROF:
        e("s_mov_b32 s92, 0")
        e("v_mov_b32 v239, 0")
    rstamp(62)
    stamp()
    e("s_load_dwordx4 s[24:27], s[0:1], 0")
    e("s_load_dwordx2 s[28:29], s[0:1], 16")
    e("s_load_dwordx2 s[30:31], s[0:1], 32")
    e("v_lshrrev_b32 v1, 6, v0")
    e("s_and_b32 s4, s2, 7")
    e("v_readfirstlane_b32 s3, v1")
    e("s_lshl_b32 s4, s4, 1")
    e("s_bfe_u32 s5, s2, 0x10003")
    e("s_or_b32 s4, s4, s5")
    e("s_lshr_b32 s5, s2, 4")
    e("s_lshr_b32 s6, s3, 2")
    e("s_and_b32 s7, s3, 3")
    e("s_lshl_b32 s5, s5, 1")
    e("s_add_u32 s5, s5, s6")
    e("s_lshl_b32 s5, s5, 4")
    e("s_getpc_b64 s[32:33]")
    lab("L_pc")
    e("s_add_u32 s%d, s32, L_rare-L_pc" % sRAREA)
    e("s_addc_u32 s%d, s33, 0" % (sRAREA + 1))
    e("s_add_u32 s32, s32, L_table-L_pc")
    e("s_addc_u32 s33, s33, 0")
    e("s_load_dwordx4 s[36:39], s[32:33], s5")
    cm("lane constants")
    e("v_and_b32 v0, 63, v0")
    e("s_lshl_b32 s34, s4, 8")
    e("v_lshrrev_b32 v16, 4, v0")
    e("v_and_b32 v17, 15, v0")
    e("s_lshl_b32 s35, s7, 14")
    e("s_add_u32 s35, s35, s34")
    e("v_xor_b32 v18, v17, v16")
    e("v_lshlrev_b32 v18, 4, v18")
    e("v_lshl_add_u32 v22, v16, 12, v18")
    e("v_add_u32 v%d, s35, v22" % vKoff)
    e("v_add_u32 v%d, 0x10000, v%d" % (vKoff2, vKoff))
    e("s_lshl_b32 s35, s7, 12")
    e("s_add_u32 s35, s35, s34")
    e("v_lshlrev_b32 v18, 4, v17")
    e("v_lshl_add_u32 v18, v16, 14, v18")
    e("v_add_u32 v%d, s35, v18" % vVoff)
    e("v_add_u32 v%d, 0x10000, v%d" % (vVoff2, vVoff))
    e("s_mul_i32 s%d, s6, %d" % (sHB, HALF_LDS))
    e("s_mul_i32 s35, s7, %d" % GRP)
    e("s_add_u32 s%d, s%d, s35" % (sKW, sHB))
    e("s_add_u32 s%d, s%d, %d" % (sVW, sKW, NS * TILE))
    e("s_add_u32 s%d, s%d, %d" % (sKW2, sKW, 4 * GRP))
    e("s_add_u32 s%d, s%d, %d" % (sVW2, sVW, 4 * GRP))
    e("s_mov_b32 s%d, 0" % sA)
    e("s_mov_b32 s%d, %d" % (sB, 2 * TILE))
    e("s_mov_b32 s%d, %d" % (sVD, 3 * TILE))
    e("s_add_u32 s33, s7, 4")
    e("s_cmp_eq_u32 s7, 1")
    e("s_cselect_b32 s33, 3, s33")
    e("s_mul_i32 s59, s33, %d" % TILE)
    e("v_and_b32 v16, 31, v0")
    e("v_lshrrev_b32 v17, 5, v0")
    e("s_lshl_b32 s35, s7, 5")
    e("s_waitcnt lgkmcnt(0)")
    stamp()
    cm("SRDs; K/V descriptors end at the stream's last key")
    e("s_add_u32 s33, s36, s37")
    e("s_lshl_b32 s33, s33, 12")
    e("s_mov_b32 s%d, s26" % sK)
    e("s_and_b32 s%d, s27, 0xffff" % (sK + 1))
    e("s_mov_b32 s%d, s33" % (sK + 2))
    e("s_mov_b32 s%d, 0x00020000" % (sK + 3))
    e("s_lshl_b32 s%d, s36, 12" % sKG)
    issue_K(0)
    e("s_mov_b32 s%d, s24" % sQ)
    e("s_and_b32 s%d, s25, 0xffff" % (sQ + 1))
    e("s_mov_b32 s%d, %d" % (sQ + 2, NBYTES))
    e("s_mov_b32 s%d, 0x00020000" % (sQ + 3))
    e("s_add_u32 s%d, s38, s35" % sQROW)
    cm("Q tile -> staging slot, K-tile layout; k-split WGs share it between the halves (each loads 4 of 8 groups)")
    e("s_bfe_u32 s%d, s39, 0x10010" % sMERGE)
    e("s_cmp_eq_u32 s%d, 0" % sMERGE)
    e("s_cselect_b32 s60, s6, 0")
    e("s_cselect_b32 s61, 0, s6")
    e("s_mul_i32 s35, s60, %d" % TILE)
    e("s_add_u32 s35, s35, %d" % XTRA)
    e("s_mul_i32 s60, s60, %d" % HALF_LDS)
    e("s_add_u32 s60, s60, s59")
    e("s_cmp_eq_u32 s7, 0")
    e("s_cselect_b32 s%d, s35, s60" % sQST)
    e("s_lshl_b32 s35, s%d, 12" % sQROW)
    e("s_add_u32 s35, s35, s34")
    e("v_add_u32 v22, s35, v22")
    e("s_lshl_b32 s35, s61, 16")
    e("s_mul_i32 s61, s61, %d" % (4 * GRP))
    e("s_add_u32 s61, s61, s%d" % sQST)
    for g in range(8):
        if g == 4:
            e("s_cmp_lg_u32 s%d, 0" % sMERGE)
            e("s_cbranch_scc1 L_qdone")
        e("s_add_u32 m0, s61, %d" % (g * GRP))
        e("s_nop 0")
        e("buffer_load_dwordx4 v22, s[%d:%d], s35 offen%s lds" % (sQ, sQ + 3, " nt" if "qnt" in XF else ""))
        if g < 7:
            e("s_add_u32 s35, s35, 0x4000")
    lab("L_qdone")
    issue_K(1)
    e("s_mov_b32 s%d, s28" % sV)
    e("s_and_b32 s%d, s29, 0xffff" % (sV + 1))
    e("s_mov_b32 s%d, s33" % (sV + 2))
    e("s_mov_b32 s%d, 0x00020000" % (sV + 3))
    e("s_lshl_b32 s%d, s36, 12" % sVG)
    issue_V(0)
    if "early" in XF:
        issue_K(2)
        issue_V(1)
    e("s_mov_b32 s%d, s30" % sO)
    e("s_and_b32 s%d, s31, 0xffff" % (sO + 1))
    e("s_and_b32 s%d, s39, 0xffff" % sQLIM)
    e("s_lshl_b32 s%d, s%d, 12" % (sO + 2, sQLIM))
    e("s_mov_b32 s%d, 0x00020000" % (sO + 3))
    cm("remaining setup while the first loads fly")
    e("v_lshlrev_b32 v%d, 2, v17" % vH4)
    e("v_lshrrev_b32 v20, 2, v16")
    e("v_and_b32 v21, 3, v16")
    e("v_mul_u32_u24 v20, %d, v20" % GRP)
    e("v_lshl_add_u32 v20, v21, 8, v20")
    e("v_xor_b32 v21, v21, v17")
    e("v_lshlrev_b32 v21, 4, v21")
    e("v_add_u32 v22, v20, v21")
    e("v_xor_b32 v21, 32, v21")
    e("v_add_u32 v23, v20, v21")
    e("v_add_u32 v%d, s%d, v22" % (vKbE, sHB))
    e("v_add_u32 v%d, s%d, v23" % (vKbO, sHB))
    e("v_add_u32 v22, s%d, v22" % sQST)
    e("v_add_u32 v23, s%d, v23" % sQST)
    e("v_bfe_u32 v20, v0, 2, 2")
    e("v_mul_u32_u24 v20, %d, v20" % GRP)
    e("v_lshl_add_u32 v20, v17, 8, v20")
    e("v_bfe_u32 v21, v0, 4, 1")
    e("v_lshl_add_u32 v20, v21, 5, v20")
    e("v_and_b32 v21, 3, v0")
    e("v_lshl_add_u32 v20, v21, 3, v20")
    e("s_lshl_b32 s%d, s6, 7" % sSO01)
    e("s_xor_b32 s%d, s%d, 128" % (sSO23, sSO01))
    e("s_add_u32 s35, s%d, %d" % (sHB, NS * TILE))
    e("v_add_u32 v20, s35, v20")
    e("v_add_u32 v%d, s%d, v20" % (vVb01, sSO01))
    e("v_add_u32 v%d, s%d, v20" % (vVb23, sSO23))
    c = (128 ** -0.5) * math.log2(math.e)
    e("s_mov_b32 s%d, 0x%08x" % (sC, struct.unpack("<I", struct.pack("<f", c))[0]))
    e("s_mov_b32 s%d, s%d" % (sC + 1, sC))
    e("s_mov_b32 s%d, 0x43800000" % sTHR)
    e("s_mov_b32 s%d, 0x3f803f80" % sONE)
    e("s_add_u32 s%d, s37, 31" % sN)
    e("s_lshr_b32 s%d, s%d, 5" % (sN, sN))
    e("s_lshr_b32 s%d, s39, 20" % sNIT)
    e("s_sub_u32 s%d, s%d, 2" % (sNM2, sN))
    e("s_sub_u32 s35, s%d, 1" % sN)
    e("s_lshl_b32 s35, s35, 5")
    e("s_sub_u32 s%d, s37, s35" % sNV)
    e("s_mov_b32 s%d, 0" % sT)
    cm("tail-tile mask block: (key < nv) ? 0 : -inf ; used as the C input of the last tile's first QK MFMA")
    e("s_sub_u32 s35, s%d, 1" % sNV)
    e("v_sub_u32 v20, s35, v%d" % vH4)
    for r in range(16):
        cr = 8 * (r >> 2) + (r & 3)
        e("v_subrev_u32 v%d, %d, v20" % (vM + r, cr))
    for r in range(16):
        e("v_ashrrev_i32 v%d, 31, v%d" % (vM + r, vM + r))
    for r in range(16):
        e("v_lshlrev_b32 v%d, 23, v%d" % (vM + r, vM + r))
    for i in range(0, 64, 2):
        e("v_pk_mov_b32 %s, 0, 0" % vr(vO + i, 2))
    e("v_mov_b32 v%d, 0" % vL)
    stamp()
    cm("P1: K0 and Q landed")
    e("s_waitcnt vmcnt(%d)" % (8 if "early" in XF else 4))
    e("s_barrier")
    stamp()
    if "early" not in XF:
        issue_K(2)
        issue_V(1)
    e("s_cmp_ge_u32 s%d, s%d" % (sQROW, sQLIM))
    e("s_cbranch_scc1 L_idle_p2")
    ds.reset()
    for s in range(8):
        d = vQ + 4 * s
        e("ds_read_b128 %s, v%d offset:%d" % (vr(d, 4), 23 if (s & 1) else 22, (s >> 1) * 64))
        ds.issue(range(d, d + 4))
        k_read(s, 0)
    for s in range(8):
        qk_mfma(s)
    cm("P2: K1 landed; Q staging slots are free after this barrier")
    e("s_waitcnt vmcnt(6)")
    e("s_barrier")
    stamp()
    issue_K(3)
    issue_V(2)
    cm("row max of tile 0")
    t0, t1 = vT, vT + 1
    e("v_max3_f32 v%d, v%d, v%d, v%d" % (t0, vS, vS + 1, vS + 2))
    for i in range(3, 15, 2):
        e("v_max3_f32 v%d, v%d, v%d, v%d" % (t0, t0, vS + i, vS + i + 1))
    e("v_max_f32 v%d, v%d, v%d" % (t0, t0, vS + 15))
    e("v_mov_b32 v%d, v%d" % (t1, t0))
    e("s_nop 1")
    e("v_permlane32_swap_b32 v%d, v%d" % (t0, t1))
    e("v_max_f32 v%d, v%d, v%d" % (t0, t0, t1))
    e("v_mul_f32 v%d, s%d, v%d" % (vMC, sC, t0))
    for g in gaps_B(1, 0, dma=False):
        for f in g:
            f()
        e("s_nop 0")
    cm("main loop")
    if "kvpro" in XF: KVF[0] = ""
    def advance():
        e("s_mov_b32 s%d, s%d" % (sB, sVD))
        e("s_mov_b32 s%d, s%d" % (sVD, sA))
        e("s_add_u32 s%d, s%d, %d" % (sA, sA, TILE))
        e("s_cmp_eq_u32 s%d, %d" % (sA, NS * TILE))
        e("s_cselect_b32 s%d, 0, s%d" % (sA, sA))
    lab("L_loop")
    e("v_add_u32 v%d, s%d, v%d" % (vVa01, sA, vVb01))
    e("v_add_u32 v%d, s%d, v%d" % (vVa23, sA, vVb23))
    header()
    ds.reset()
    e("s_cmp_lg_u32 s%d, s%d" % (sT, sNM2))
    e("s_cbranch_scc1 L_nm")
    e("v_mfma_f32_32x32x16_bf16 %s, %s, %s, %s" % (vr(vS, 16), vr(vK, 4), vr(vQ, 4), vr(vM, 16)))
    e("s_branch L_m")
    lab("L_nm")
    qk_mfma(0)
    lab("L_m")
    ga = gaps_A(0, "dyn", vVa01, vVa23)
    ga[7] = ga[7] + [lambda: e("v_add_u32 v%d, s%d, v%d" % (vKaE, sB, vKbE)), lambda: e("v_add_u32 v%d, s%d, v%d" % (vKaO, sB, vKbO))]
    for s in range(8):
        if s > 0:
            qk_mfma(s)
        for f in ga[s]:
            f()
    check("l")
    gb = gaps_B("dyn", "dyn")
    gb[7] = gb[7] + [advance]
    for m in range(8):
        pv_mfma(m)
        for f in gb[m]:
            f()
    e("s_add_u32 s%d, s%d, 1" % (sT, sT))
    e("s_cmp_le_u32 s%d, s%d" % (sT, sNM2))
    e("s_cbranch_scc1 L_loop")
    cm("tail iteration")
    e("v_add_u32 v%d, s%d, v%d" % (vVa01, sA, vVb01))
    e("v_add_u32 v%d, s%d, v%d" % (vVa23, sA, vVb23))
    header()
    ds.reset()
    for g in gaps_A(0, 0, vVa01, vVa23, dma=False):
        for f in g:
            f()
        e("s_nop 0")
    check("t")
    e("s_nop 1")
    for m in range(8):
        pv_mfma(m)
    e("s_add_u32 s%d, s%d, 1" % (sT, sT))
    lab("L_service")
    e("s_cmp_ge_u32 s%d, s%d" % (sT, sNIT))
    e("s_cbranch_scc1 L_epi")
    e("s_barrier")
    e("s_add_u32 s%d, s%d, 1" % (sT, sT))
    e("s_branch L_service")
    cm("epilogue")
    lab("L_epi")
    stamp()
    e("v_mov_b32 v%d, v%d" % (t0, vL))
    e("s_waitcnt vmcnt(0)")
    e("s_nop 0")
    e("v_permlane32_swap_b32 v%d, v%d" % (vL, t0))
    e("v_add_f32 v%d, v%d, v%d" % (vL, vL, t0))
    fa, fb = vT + 4, vT + 6
    mo, lo, mn = vT + 2, vT + 3, vT
    e("s_cmp_eq_u32 s%d, 0" % sMERGE)
    e("s_cbranch_scc1 L_nomerge")
    cm("merge with partner wave (wave ^ 4): exchange through this wave's own DMA pieces of the K ring")
    e("v_lshlrev_b32 v%d, 4, v0" % t0)
    e("v_add_u32 v%d, s%d, v%d" % (t1, sKW, t0))
    e("s_add_u32 s33, s%d, %d" % (sKW, HALF_LDS))
    e("s_sub_u32 s35, s%d, %d" % (sKW, HALF_LDS))
    e("s_cmp_eq_u32 s6, 0")
    e("s_cselect_b32 s35, s33, s35")
    e("v_add_u32 v%d, s35, v%d" % (vE, t0))
    e("s_lshl_b32 s35, s3, 9")
    e("s_add_u32 s35, s35, %d" % XTRA)
    e("v_lshlrev_b32 v%d, 3, v0" % t0)
    e("v_add_u32 v%d, s35, v%d" % (vE + 1, t0))
    e("v_xor_b32 v%d, 0x800, v%d" % (vE + 2, vE + 1))
    e("s_nop 3")
    for i in range(8):
        e("ds_write_b128 v%d, %s offset:%d" % (t1, vr(vO + 32 + 4 * i, 4), (i >> 1) * TILE + (i & 1) * 4 * GRP))
    e("ds_write_b64 v%d, %s" % (vE + 1, vr(vMC, 2)))
    e("s_waitcnt lgkmcnt(0)")
    e("s_barrier")
    e("ds_read_b64 %s, v%d" % (vr(mo, 2), vE + 2))
    for i in range(8):
        e("ds_read_b128 %s, v%d offset:%d" % (vr(vK + 4 * i, 4), vE, (i >> 1) * TILE + (i & 1) * 4 * GRP))
    e("s_waitcnt lgkmcnt(8)")
    e("v_max_f32 v%d, v%d, v%d" % (mn, vMC, mo))
    e("v_sub_f32 v%d, v%d, v%d" % (fa, vMC, mn))
    e("v_sub_f32 v%d, v%d, v%d" % (fb, mo, mn))
    e("v_exp_f32 v%d, v%d" % (fa, fa))
    e("v_exp_f32 v%d, v%d" % (fb, fb))
    e("s_nop 0")
    e("v_mul_f32 v%d, v%d, v%d" % (vL, vL, fa))
    e("v_fmac_f32 v%d, v%d, v%d" % (vL, lo, fb))
    e("v_rcp_f32 v%d, v%d" % (vL, vL))
    e("s_nop 0")
    e("v_mul_f32 v%d, v%d, v%d" % (fa, fa, vL))
    e("v_mul_f32 v%d, v%d, v%d" % (fb, fb, vL))
    for i in range(0, 32, 2):
        e("v_pk_mul_f32 %s, %s, %s op_sel_hi:[1,0]" % (vr(vO + i, 2), vr(vO + i, 2), vr(fa, 2)))
    for i in range(0, 32, 2):
        if i % 4 == 0:
            e("s_waitcnt lgkmcnt(%d)" % (7 - i // 4))
        e("v_pk_fma_f32 %s, %s, %s, %s op_sel_hi:[1,0,1]" % (vr(vO + i, 2), vr(vK + i, 2), vr(fb, 2), vr(vO + i, 2)))
    e("s_branch L_store")
    lab("L_nomerge")
    e("v_rcp_f32 v%d, v%d" % (fa, vL))
    e("s_nop 7")
    for i in range(0, 64, 2):
        e("v_pk_mul_f32 %s, %s, %s op_sel_hi:[1,0]" % (vr(vO + i, 2), vr(vO + i, 2), vr(fa, 2)))
    lab("L_store")
    stamp()
    cm("stage the bf16 tile through this wave's own LDS pieces (rows of 272 B, 4 rows per piece), then store whole rows")
    e("s_cmp_lg_u32 s%d, 0" % sMERGE)
    e("s_cselect_b32 s60, s%d, s%d" % (sVW, sKW))
    e("s_cselect_b32 s61, 0, s%d" % sSO01)
    e("v_and_b32 v%d, 31, v0" % t0)
    e("v_lshrrev_b32 v%d, 3, v%d" % (t1, t0))
    e("v_mul_u32_u24 v%d, %d, v%d" % (t1, TILE, t1))
    e("v_bfe_u32 v%d, v%d, 2, 1" % (vT + 2, t0))
    e("v_mul_u32_u24 v%d, %d, v%d" % (vT + 2, 4 * GRP, vT + 2))
    e("v_and_b32 v%d, 3, v%d" % (vT + 3, t0))
    e("v_mul_u32_u24 v%d, 272, v%d" % (vT + 3, vT + 3))
    e("v_add3_u32 v%d, v%d, v%d, v%d" % (t1, t1, vT + 2, vT + 3))
    e("v_lshrrev_b32 v%d, 5, v0" % t0)
    e("v_lshl_add_u32 v%d, v%d, 4, v%d" % (t1, t0, t1))
    e("v_add_u32 v%d, s60, v%d" % (t1, t1))
    e("v_add_u32 v%d, s61, v%d" % (vE, t1))
    e("v_add_u32 v%d, s%d, v%d" % (vE + 1, sSO23, t1))
    def stage_blocks(b0, a):
        for b in (b0, b0 + 1):
            for p in range(2):
                q = vV + ((b & 3) * 2 + p) * 4
                src = vO + 16 * b + 8 * p
                for k in range(4):
                    e("v_cvt_pk_bf16_f32 v%d, v%d, v%d" % (q + k, src + 2 * k, src + 2 * k + 1))
                e("s_nop 1")
                e("v_permlane32_swap_b32 v%d, v%d" % (q, q + 2))
                e("v_permlane32_swap_b32 v%d, v%d" % (q + 1, q + 3))
                e("ds_write_b128 v%d, %s offset:%d" % (a, vr(q, 4), (b & 1) * 64 + p * 32))
    stage_blocks(0, vE)
    e("s_lshl_b32 s35, s%d, 12" % sQROW)
    e("s_add_u32 s35, s35, s34")
    e("s_cmp_lg_u32 s%d, 0" % sMERGE)
    e("s_cbranch_scc1 L_st_merge")
    stage_blocks(2, vE + 1)
    e("v_lshrrev_b32 v%d, 4, v0" % t0)
    e("v_and_b32 v%d, 15, v0" % t1)
    e("v_lshlrev_b32 v%d, 4, v%d" % (t1, t1))
    e("v_mul_u32_u24 v%d, 272, v%d" % (vT + 2, t0))
    e("v_add3_u32 v%d, v%d, v%d, s60" % (vT + 2, vT + 2, t1))
    e("v_lshl_add_u32 v%d, v%d, 12, v%d" % (vT + 3, t0, t1))
    e("s_waitcnt lgkmcnt(0)")
    for k in range(8):
        e("ds_read_b128 %s, v%d offset:%d" % (vr(vK + 4 * k, 4), vT + 2, (k >> 1) * TILE + (k & 1) * 4 * GRP))
    for k in range(8):
        e("s_waitcnt lgkmcnt(%d)" % (7 - k))
        e("buffer_store_dwordx4 %s, v%d, s[%d:%d], s35 offen%s" % (vr(vK + 4 * k, 4), vT + 3, sO, sO + 3, STF))
        if k < 7:
            e("s_add_u32 s35, s35, 0x4000")
    e("s_branch L_fin")
    lab("L_st_merge")
    e("v_lshrrev_b32 v%d, 3, v0" % t0)
    e("v_and_b32 v%d, 7, v0" % t1)
    e("v_lshlrev_b32 v%d, 4, v%d" % (t1, t1))
    e("v_and_b32 v%d, 3, v%d" % (vT + 2, t0))
    e("v_mul_u32_u24 v%d, 272, v%d" % (vT + 2, vT + 2))
    e("v_lshrrev_b32 v%d, 5, v0" % (vT + 3))
    e("v_mul_u32_u24 v%d, %d, v%d" % (vT + 3, 4 * GRP, vT + 3))
    e("v_add3_u32 v%d, v%d, v%d, v%d" % (vT + 2, vT + 2, vT + 3, t1))
    e("v_add_u32 v%d, s60, v%d" % (vT + 2, vT + 2))
    e("v_lshl_add_u32 v%d, v%d, 12, v%d" % (vT + 3, t0, t1))
    e("s_add_u32 s35, s35, s%d" % sSO01)
    e("s_waitcnt lgkmcnt(0)")
    for k in range(4):
        e("ds_read_b128 %s, v%d offset:%d" % (vr(vK + 4 * k, 4), vT + 2, k * TILE))
    for k in range(4):
        e("s_waitcnt lgkmcnt(%d)" % (3 - k))
        e("buffer_store_dwordx4 %s, v%d, s[%d:%d], s35 offen%s" % (vr(vK + 4 * k, 4), vT + 3, sO, sO + 3, STF))
        if k < 3:
            e("s_add_u32 s35, s35, 0x8000")
    lab("L_fin")
    if PROF:
        e("s_waitcnt vmcnt(0)")
    stamp_flush()
    e("s_endpgm")
    cm("waves without q rows: only DMA duty and barriers")
    lab("L_idle_p2")
    e("s_waitcnt vmcnt(6)")
    e("s_barrier")
    issue_K(3)
    issue_V(2)
    lab("L_idle_loop")
    e("s_waitcnt vmcnt(6)")
    e("s_barrier")
    issue_K("dyn")
    issue_V("dyn")
    advance()
    e("s_add_u32 s%d, s%d, 1" % (sT, sT))
    e("s_cmp_lt_u32 s%d, s%d" % (sT, sNIT))
    e("s_cbranch_scc1 L_idle_loop")
    lab("L_idle_epi")
    e("s_waitcnt vmcnt(0)")
    e("s_cmp_eq_u32 s%d, 0" % sMERGE)
    e("s_cbranch_scc1 L_end")
    e("s_barrier")
    lab("L_end")
    e("s_endpgm")
    for tag in stubs:
        lab("L_rs%s" % tag)
        e("s_swappc_b64 s[%d:%d], s[%d:%d]" % (sLNK, sLNK + 1, sRAREA, sRAREA + 1))
        e("s_branch L_ret%s" % tag)
    cm("rare path: running max grew too much; rescale and recompute this tile's P")
    lab("L_rare")
    e("v_max3_f32 v%d, v%d, v%d, v%d" % (t0, vX, vX + 1, vX + 2))
    for i in range(3, 15, 2):
        e("v_max3_f32 v%d, v%d, v%d, v%d" % (t0, t0, vX + i, vX + i + 1))
    e("v_max_f32 v%d, v%d, v%d" % (t0, t0, vX + 15))
    e("v_mov_b32 v%d, v%d" % (t1, t0))
    e("s_nop 1")
    e("v_permlane32_swap_b32 v%d, v%d" % (t0, t1))
    e("v_max3_f32 v%d, v%d, v%d, 0" % (t0, t0, t1))
    e("v_add_f32 v%d, v%d, v%d" % (vMC, vMC, t0))
    e("v_exp_f32 v%d, -v%d" % (t1, t0))
    e("s_nop 0")
    e("v_mul_f32 v%d, v%d, v%d" % (vL, vL, t1))
    for i in range(64):
        e("v_mul_f32 v%d, v%d, v%d" % (vO + i, vO + i, t1))
    for i in range(16):
        e("v_sub_f32 v%d, v%d, v%d" % (vX + i, vX + i, t0))
    e("v_mov_b32 v%d, 0" % vTS)
    for p in range(8):
        a, b = vT + 2 + (p & 1) * 2, vT + 3 + (p & 1) * 2
        e("v_exp_f32 v%d, v%d" % (a, vX + 2 * p))
        e("v_exp_f32 v%d, v%d" % (b, vX + 2 * p + 1))
        e("s_nop 0")
        e("v_add_f32 v%d, v%d, v%d" % (vTS, vTS, a))
        e("v_add_f32 v%d, v%d, v%d" % (vTS, vTS, b))
        e("v_cvt_pk_bf16_f32 v%d, v%d, v%d" % (vP + p, a, b))
    e("s_nop 1")
    e("s_setpc_b64 s[%d:%d]" % (sLNK, sLNK + 1))
    out.append(".p2align 6")
    out.append(".type L_table,@object")
    lab("L_table")
    for r in TABLE:
        out.append("    .long %d, %d, %d, 0x%x" % r)
    out.append(".size L_table, %d" % (16 * len(TABLE)))
    out.append('.section .rodata,"a"')
    out.append(".p2align 6")
    out.append(".amdhsa_kernel %s_kernel" % NAME)
    out.append("  .amdhsa_next_free_vgpr 256")
    out.append("  .amdhsa_next_free_sgpr 96")
    out.append("  .amdhsa_accum_offset 256")
    out.append("  .amdhsa_group_segment_fixed_size 0")
    out.append("  .amdhsa_kernarg_size 56")
    out.append("  .amdhsa_user_sgpr_count 2")
    out.append("  .amdhsa_user_sgpr_kernarg_segment_ptr 1")
    out.append("  .amdhsa_system_sgpr_workgroup_id_x 1")
    out.append(".end_amdhsa_kernel")

assert XTRA % 4096 == 0, XTRA
gen()
dst = sys.argv[1] if len(sys.argv) > 1 else "cdna_kernels/%s.s" % NAME
open(dst, "w").write("\n".join(out) + "\n")
print("wrote", dst, len(out), "lines")
```
